```python
import torch

def _softmax(x, axis=-1):
    return torch.softmax(x, dim=axis)
def _gelu(x):
    return torch.nn.functional.gelu(x, approximate="tanh")
def _silu(x):
    return torch.nn.functional.silu(x)
def _sigmoid(x):
    return torch.sigmoid(x)
def _layernorm(x, axis=-1, eps=1e-5):
    m = x.mean(dim=axis, keepdim=True)
    v = x.var(dim=axis, keepdim=True, unbiased=False)
    return (x - m) / torch.sqrt(v + eps)
def _scatter_add(tgt, idx, src, axis=0):
    return tgt.clone().index_add_(axis, idx, src)
def _segment_sum(src, seg, n):
    out = torch.zeros((n,) + src.shape[1:], dtype=src.dtype)
    return out.index_add_(0, seg, src)
def _pad(x, pw):
    flat = tuple(v for pair in reversed(pw) for v in pair)
    return torch.nn.functional.pad(x, flat)

kernel_name = 'concat_heads__linear_kernel_hedgehog__spectral_fnet__prompt'

def setup_inputs():

    _w = (lambda a: (lambda t: t.to(torch.bfloat16) if t.is_floating_point() else t)(torch.as_tensor(a)))
    def _A_setup():
        B, S, D, H = 1, 2048, 512, 32
        Dh = D // H
        return {
            "x": _w((lambda *s: torch.randn(*s, dtype=torch.bfloat16) * 0.2)(B, S, D)),
            "wqkv": _w((lambda *s: torch.randn(*s, dtype=torch.bfloat16) * 1.6)(D, 3 * D)),
            "w_phi": _w((lambda *s: torch.randn(*s, dtype=torch.bfloat16) * 1.6)(H, Dh, Dh) * (Dh ** -0.5)),
            "wo": _w((lambda *s: torch.randn(*s, dtype=torch.bfloat16) * 0.8)(D, D)),
        }
    _A_in = _A_setup()

    def _B_setup():
        B, S, D = 1, 2048, 512
        ns = torch.arange(S)[:, None] * torch.arange(S)[None, :]
        nd = torch.arange(D)[:, None] * torch.arange(D)[None, :]
        Ws_re = torch.cos(-2.0 * torch.pi * ns / S).to(float)
        Ws_im = torch.sin(-2.0 * torch.pi * ns / S).to(float)
        Wd_re = torch.cos(-2.0 * torch.pi * nd / D).to(float)
        Wd_im = torch.sin(-2.0 * torch.pi * nd / D).to(float)
        return {
            "x": _w((lambda *s: torch.randn(*s, dtype=torch.bfloat16) * 0.05)(B, S, D)),
            "dft_seq_re": _w(Ws_re),
            "dft_seq_im": _w(Ws_im),
            "dft_hid_re": _w(Wd_re),
            "dft_hid_im": _w(Wd_im),
        }
    _B_in = _B_setup()

    return {
        "A_x": _A_in["x"],
        "A_wqkv": _A_in["wqkv"],
        "A_w_phi": _A_in["w_phi"],
        "A_wo": _A_in["wo"],
        "B_x": _B_in["x"],
        "B_dft_seq_re": _B_in["dft_seq_re"],
        "B_dft_seq_im": _B_in["dft_seq_im"],
        "B_dft_hid_re": _B_in["dft_hid_re"],
        "B_dft_hid_im": _B_in["dft_hid_im"],
    }

def reference(A_x, A_wqkv, A_w_phi, A_wo, B_x, B_dft_seq_re, B_dft_seq_im, B_dft_hid_re, B_dft_hid_im):
    def _A_ref(x, wqkv, w_phi, wo):
        B, S, D = x.shape
        H = 32; Dh = D // H
        qkv = (lambda x, *d: x.permute(*d))((x @ wqkv).reshape(B, S, 3, H, Dh), 2, 0, 3, 1, 4)
        q, k, v = qkv[0], qkv[1], qkv[2]
        pq = torch.einsum("bhsd,hdf->bhsf", q, w_phi)
        pk = torch.einsum("bhsd,hdf->bhsf", k, w_phi)
        phi_q = torch.concatenate([_softmax(pq, axis=-1), _softmax(-pq, axis=-1)], axis=-1)
        phi_k = torch.concatenate([_softmax(pk, axis=-1), _softmax(-pk, axis=-1)], axis=-1)
        kv = torch.einsum("bhsf,bhsd->bhfd", phi_k, v)
        z  = torch.einsum("bhsf->bhf", phi_k)
        num = torch.einsum("bhqf,bhfd->bhqd", phi_q, kv)
        den = torch.einsum("bhqf,bhf->bhq", phi_q, z)[..., None] + 1e-6
        o = num / den
        return (lambda x, *d: x.permute(*d))(o, 0, 2, 1, 3).reshape(B, S, D) @ wo

    def _B_ref(x, dft_seq_re, dft_seq_im, dft_hid_re, dft_hid_im):
        a = torch.einsum("bsd,ed->bse", x, dft_hid_re)
        b = torch.einsum("bsd,ed->bse", x, dft_hid_im)
        y = torch.einsum("ts,bse->bte", dft_seq_re, a) - torch.einsum("ts,bse->bte", dft_seq_im, b)
        return y

    a = _A_ref(A_x, A_wqkv, A_w_phi, A_wo)
    b = _B_ref(B_x, B_dft_seq_re, B_dft_seq_im, B_dft_hid_re, B_dft_hid_im)
    return torch.concatenate([a, b], axis=-1)
```

```python
import re

TRANS = ("v_exp_f32", "v_log_f32", "v_rcp_f32", "v_rsq_f32", "v_sqrt_f32", "v_sin_f32", "v_cos_f32")

REG_RE = re.compile(r"\b([vas])\[(\d+):(\d+)\]|\b([vas])(\d+)\b")


def regs_of(tok):
    out = []
    for m in REG_RE.finditer(tok):
        if m.group(1):
            k, lo, hi = m.group(1), int(m.group(2)), int(m.group(3))
            out += [(k, i) for i in range(lo, hi + 1)]
        else:
            out.append((m.group(4), int(m.group(5))))
    if re.search(r"\bvcc\b", tok):
        out.append(("s", "vcc"))
    if re.search(r"\bexec\b", tok):
        out.append(("s", "exec"))
    if re.search(r"\bm0\b", tok):
        out.append(("s", "m0"))
    return out


class Ins:
    __slots__ = ("text", "op", "dst", "src", "kind", "passes", "srcc", "srcab")


def split_ops(rest):
    toks, cur, depth = [], "", 0
    for ch in rest:
        if ch == "[":
            depth += 1
        if ch == "]":
            depth -= 1
        if ch == "," and depth == 0:
            toks.append(cur.strip())
            cur = ""
        else:
            cur += ch
    if cur.strip():
        toks.append(cur.strip())
    return toks


def parse(text):
    t = text.split(";")[0].strip()
    ins = Ins()
    ins.text = text
    ins.dst, ins.src, ins.passes, ins.srcc, ins.srcab = [], [], 0, [], []
    if not t or t.endswith(":") or t.startswith("."):
        ins.op = ""
        ins.kind = "none"
        return ins
    parts = t.split(None, 1)
    op = parts[0]
    rest = parts[1] if len(parts) > 1 else ""
    ins.op = op
    toks = split_ops(rest)
    if op.startswith("v_mfma"):
        ins.kind = "mfma"
        ins.passes = 8 if "32x32" in op else 4
        ins.dst = regs_of(toks[0])
        ins.srcab = regs_of(toks[1]) + regs_of(toks[2])
        ins.srcc = regs_of(toks[3])
        ins.src = ins.srcab + ins.srcc
    elif op.startswith("v_cmp") :
        ins.kind = "valu"
        ins.dst = regs_of(toks[0])
        if op.startswith("v_cmpx"):
            ins.dst.append(("s", "exec"))
        for x in toks[1:]:
            ins.src += regs_of(x)
    elif op.startswith("v_"):
        ins.kind = "valu"
        if op in TRANS or op.replace("_e32", "").replace("_e64", "") in TRANS:
            ins.kind = "trans"
        ins.dst = regs_of(toks[0])
        k = 1
        if op.startswith(("v_add_co", "v_sub_co", "v_addc_co", "v_subb_co", "v_subrev_co")):
            ins.dst += regs_of(toks[1])
            k = 2
        for x in toks[k:]:
            ins.src += regs_of(x)
        if op.startswith(("v_permlane32_swap", "v_permlane16_swap")):
            ins.dst += regs_of(toks[1])
            ins.src += regs_of(toks[0])
        if op.startswith(("v_fmac", "v_pk_fmac", "v_dot2c")):
            ins.src += regs_of(toks[0])
        if op.startswith("v_cndmask") and len(toks) == 3:
            ins.src.append(("s", "vcc"))
    elif op.startswith("ds_"):
        ins.kind = "ds"
        if op.startswith(("ds_read", "ds_bpermute", "ds_permute", "ds_swizzle")):
            ins.dst = regs_of(toks[0])
            for x in toks[1:]:
                ins.src += regs_of(x)
        else:
            for x in toks:
                ins.src += regs_of(x)
    elif op.startswith(("buffer_", "global_")):
        ins.kind = "vmem"
        is_lds = re.search(r"\blds\b", rest) is not None
        if ("load" in op) and not is_lds:
            ins.dst = regs_of(toks[0])
            for x in toks[1:]:
                ins.src += regs_of(x)
        else:
            for x in toks:
                ins.src += regs_of(x)
            if is_lds:
                ins.src.append(("s", "m0"))
            if "atomic" in op and re.search(r"\bsc0\b", rest):
                ins.dst = regs_of(toks[0])
    elif op.startswith("s_"):
        ins.kind = "salu"
        if op.startswith(("s_waitcnt", "s_barrier", "s_nop", "s_branch", "s_cbranch", "s_endpgm", "s_setprio", "s_sleep")):
            pass
        elif op.startswith("s_cmp"):
            for x in toks:
                ins.src += regs_of(x)
        else:
            ins.dst = regs_of(toks[0])
            for x in toks[1:]:
                ins.src += regs_of(x)
            if "saveexec" in op:
                ins.dst.append(("s", "exec"))
    else:
        ins.kind = "none"
    return ins


class Asm:
    def __init__(self):
        self.out = []
        self.hist = []
        self.slot = 0
        self.last_valu_w = {}
        self.last_trans_w = {}
        self.last_mfma_w = {}
        self.last_mfma_c = {}
        self.last_valu_sw = {}
        self.last_salu_m0 = -100
        self.last_store_data = {}
        self.last_valu_exec = -100
        self.ninstr = 0

    def raw(self, text):
        self.out.append(text)

    def comment(self, text):
        self.out.append("; " + text)

    def label(self, name):
        self.fence()
        self.out.append(name + ":")

    def fence(self, n=18):
        need = 0
        for r, (s, p, _) in self.last_mfma_w.items():
            need = max(need, s + (12 if p == 8 else 8) + 1 - self.slot - 1)
        for r, s in self.last_valu_w.items():
            need = max(need, s + 2 + 1 - self.slot - 1)
        for r, s in self.last_valu_sw.items():
            need = max(need, s + 5 + 1 - self.slot - 1)
        if need > 0:
            self.nop(need)

    def nop(self, n):
        while n > 0:
            k = min(n, 16)
            self.out.append("s_nop %d" % (k - 1))
            self.slot += k
            n -= k

    def __call__(self, text):
        for line in text.split("\n"):
            line = line.strip()
            if not line:
                continue
            self.emit(line)

    def emit(self, text):
        ins = parse(text)
        if ins.kind == "none":
            self.out.append(text)
            return
        if ins.op.startswith(("s_cbranch", "s_branch")):
            self.fence()
        need = 0

        def req(prod_slot, ws):
            nonlocal need
            need = max(need, prod_slot + ws + 1)

        isvalu = ins.kind in ("valu", "trans")
        if ins.kind == "mfma":
            for r in ins.src:
                if r in self.last_valu_w:
                    req(self.last_valu_w[r], 2)
            if ("s", "exec") in [("s", "exec")]:
                req(self.last_valu_exec, 4)
            for r in ins.srcab:
                if r in self.last_mfma_w:
                    s, p, d = self.last_mfma_w[r]
                    req(s, 12 if p == 8 else 8)
            for r in ins.srcc:
                if r in self.last_mfma_w:
                    s, p, d = self.last_mfma_w[r]
                    if tuple(ins.srcc) == d and p == ins.passes:
                        pass
                    else:
                        req(s, 10 if p == 8 else 6)
            for r in ins.dst:
                if r in self.last_mfma_w and r not in ins.srcc:
                    s, p, d = self.last_mfma_w[r]
                    req(s, 12 if p == 8 else 8)
        else:
            for r in ins.src + ins.dst:
                if r in self.last_mfma_w and ins.kind != "salu":
                    s, p, d = self.last_mfma_w[r]
                    req(s, 12 if p == 8 else 8)
            if isvalu or ins.kind in ("ds", "vmem"):
                for r in ins.dst:
                    if r in self.last_mfma_c:
                        s, p = self.last_mfma_c[r]
                        req(s, 7 if p == 8 else 3)
        if isvalu:
            for r in ins.src:
                if r in self.last_trans_w and ins.kind != "trans":
                    req(self.last_trans_w[r], 1)
                if r[0] == "s" and r in self.last_valu_sw:
                    req(self.last_valu_sw[r], 4 if ins.op.startswith(("v_readlane", "v_writelane")) else 2)
            if ins.op.startswith(("v_permlane", )) or "dpp" in ins.text or "row_" in ins.text or "quad_perm" in ins.text:
                for r in ins.src:
                    if r in self.last_valu_w:
                        req(self.last_valu_w[r], 2)
                req(self.last_valu_exec, 5)
            if ins.op.startswith(("v_readlane", "v_readfirstlane")):
                for r in ins.src:
                    if r in self.last_valu_w:
                        req(self.last_valu_w[r], 1)
                req(self.last_valu_exec, 4)
            for r in ins.dst:
                if r in self.last_store_data:
                    req(self.last_store_data[r], 2)
        if ins.kind == "trans":
            for r in ins.src:
                if r in self.last_trans_w:
                    req(self.last_trans_w[r], 1)
        if ins.kind in ("vmem", "ds"):
            for r in ins.src:
                if r[0] == "s" and r in self.last_valu_sw:
                    req(self.last_valu_sw[r], 5)
                if r in self.last_trans_w:
                    req(self.last_trans_w[r], 1)
            if ("s", "m0") in ins.src:
                req(self.last_salu_m0, 1)
            for r in ins.dst:
                if r in self.last_store_data:
                    req(self.last_store_data[r], 1)
        if ins.kind == "salu":
            for r in ins.src:
                if r in self.last_valu_sw:
                    req(self.last_valu_sw[r], 4)
        if need > self.slot:
            self.nop(need - self.slot)
        me = self.slot
        self.out.append(text)
        self.ninstr += 1
        self.slot += 1
        if ins.op == "s_nop":
            self.slot += int(text.split()[1])
        for r in ins.dst:
            self.last_valu_w.pop(r, None)
            self.last_trans_w.pop(r, None)
            if ins.kind != "mfma":
                self.last_mfma_w.pop(r, None)
            self.last_valu_sw.pop(r, None)
        if isvalu:
            for r in ins.dst:
                if r[0] in "va":
                    self.last_valu_w[r] = me
                    if ins.kind == "trans":
                        self.last_trans_w[r] = me
                else:
                    self.last_valu_sw[r] = me
                    if r == ("s", "exec"):
                        self.last_valu_exec = me
        if ins.kind == "mfma":
            d = tuple(ins.dst)
            for r in ins.dst:
                self.last_mfma_w[r] = (me, ins.passes, d)
            for r in ins.srcc:
                self.last_mfma_c[r] = (me, ins.passes)
        if ins.kind == "salu" and ("s", "m0") in ins.dst:
            self.last_salu_m0 = me
        if ins.kind == "vmem" and ("store" in ins.op or "atomic" in ins.op) and ("x4" in ins.op or "x3" in ins.op):
            toks = split_ops(ins.text.split(";")[0].split(None, 1)[1])
            for tk in toks[:2]:
                rr = regs_of(tk)
                if len(rr) >= 3 and rr[0][0] in "va":
                    for r in rr:
                        self.last_store_data[r] = me

    def text(self):
        return "\n".join(self.out) + "\n"


def vr(lo, n=1):
    return "v%d" % lo if n == 1 else "v[%d:%d]" % (lo, lo + n - 1)


def ar(lo, n=1):
    return "a%d" % lo if n == 1 else "a[%d:%d]" % (lo, lo + n - 1)


def sr(lo, n=1):
    return "s%d" % lo if n == 1 else "s[%d:%d]" % (lo, lo + n - 1)
```

```python
from dsl import Asm
from gen import *

L_WO = 0
L_KV = 65536
L_H = 102400
L_RED = 110592


def gen_k2(a):
    K = "k2_kernel"
    a.raw(".globl %s\n.p2align 8\n.type %s,@function\n%s:" % (K, K, K))
    a("s_cmp_ge_u32 s2, 256")
    a("s_cbranch_scc1 K2_END")
    load_ptrs(a)
    a("v_lshrrev_b32 v1, 6, v0")
    a("v_and_b32 v0, 63, v0")
    a("v_readfirstlane_b32 s3, v1")
    a("s_and_b32 s4, s2, 7")
    a("s_lshr_b32 s5, s2, 3")
    a("s_lshr_b32 s6, s5, 3")
    a("s_lshl_b32 s8, s4, 2")
    a("s_add_u32 s8, s8, s6")
    a("s_and_b32 s9, s5, 7")
    S_RT, S_CT, S_J, S_T1 = 8, 9, 4, 5
    a("s_waitcnt lgkmcnt(0)")
    srd(a, R_WS, P_WS, WS_SIZE)
    srd(a, R_WO, P_WO, 512 * 1024)
    srd(a, R_CR, P_CR, 2048 * 4096)
    srd(a, R_CI, P_CI, 2048 * 4096)
    srd(a, R_OUT, P_OUT, 2048 * 2048)
    a("s_cmp_ge_u32 s3, 4")
    a("s_cbranch_scc1 K2_HELPER")

    VKA, VWA, VT, VR = 1, 2, 3, 4
    OUT = 8
    D = 40
    KVF = 72
    WOF = 96
    PHI = 128
    a("s_and_b32 s10, s3, 1")
    a("s_lshr_b32 s11, s3, 1")
    a("s_lshl_b32 s18, s%d, 1" % S_RT)
    a("s_add_u32 s18, s18, s10")
    a("s_lshl_b32 s12, s18, 16")
    a("s_lshl_b32 s19, s11, 15")
    a("s_add_u32 s12, s12, s19")
    a("s_add_u32 s12, s12, 0x%x" % WS_PHI)
    a("v_lshlrev_b32 v%d, 4, v0" % VT)
    for t in range(16):
        for ks in range(2):
            o = t * 2048 + ks * 1024
            if o % 4096 == 0 and o:
                a("s_add_u32 s12, s12, 0x1000")
            r = PHI + t * 8 + ks * 4
            a("buffer_load_dwordx4 v[%d:%d], v%d, s[%d:%d], s12 offen offset:%d" % (r, r + 3, VT, R_WS, R_WS + 3, o % 4096))
    a("v_and_b32 v5, 31, v0")
    a("v_min_u32 v5, 16, v5")
    a("v_lshlrev_b32 v5, 4, v5")
    a("v_lshrrev_b32 v6, 5, v0")
    a("v_mul_u32_u24 v7, 272, v6")
    a("v_add_u32 v5, v5, v7")
    a("s_mul_i32 s18, s11, %d" % (16 * 1088))
    a("s_add_u32 s18, s18, 0x%x" % L_KV)
    a("v_add_u32 v%d, s18, v5" % VKA)
    a("v_lshrrev_b32 v5, 2, v0")
    a("v_and_b32 v5, 3, v5")
    a("v_lshl_or_b32 v5, v6, 3, v5")
    a("v_lshlrev_b32 v5, 6, v5")
    a("v_and_b32 v7, 16, v0")
    a("v_lshl_or_b32 v5, v7, 1, v5")
    a("v_and_b32 v7, 1, v0")
    a("v_lshl_or_b32 v5, v7, 4, v5")
    a("v_and_b32 v7, 2, v0")
    a("v_lshl_or_b32 v5, v7, 2, v5")
    a("s_lshl_b32 s18, s11, 14")
    a("v_add_u32 v%d, s18, v5" % VWA)
    for r in range(32):
        a("v_mov_b32 v%d, 0" % (OUT + r))
    a("s_mov_b32 s20, 0x358637bd")

    def kvreads(t):
        b = KVF + (t % 3) * 8
        for ks in range(2):
            a("ds_read_b128 v[%d:%d], v%d offset:%d" % (b + 4 * ks, b + 4 * ks + 3, VKA, t * 1088 + ks * 544))

    def woreads(t):
        b = WOF + (t % 2) * 16
        for ch in range(2):
            for hf in range(2):
                d = b + ch * 4 + hf * 2
                a("ds_read_b64_tr_b16 v[%d:%d], v%d offset:%d" % (d, d + 1, VWA, ch * 32768 + (16 * t + 4 * hf) * 64))

    def nd(t):
        b = KVF + (t % 3) * 8
        d = D + (t % 2) * 16
        p = PHI + t * 8
        a("v_mfma_f32_32x32x16_bf16 v[%d:%d], v[%d:%d], v[%d:%d], 0" % (d, d + 15, b, b + 3, p, p + 3))
        a("v_mfma_f32_32x32x16_bf16 v[%d:%d], v[%d:%d], v[%d:%d], v[%d:%d]" % (d, d + 15, b + 4, b + 7, p + 4, p + 7, d, d + 15))

    def valu(t):
        d = D + (t % 2) * 16
        a("v_add_f32 v%d, s20, v%d" % (VR, d + 8))
        a("v_rcp_f32 v%d, v%d" % (VR, VR))
        for r in range(8):
            a("v_mul_f32 v%d, v%d, v%d" % (d + r, d + r, VR))
        for k in range(4):
            a("v_cvt_pk_bf16_f32 v%d, v%d, v%d" % (d + k, d + 2 * k, d + 2 * k + 1))

    def outm(t):
        b = WOF + (t % 2) * 16
        d = D + (t % 2) * 16
        for ch in range(2):
            o = OUT + 16 * ch
            a("v_mfma_f32_32x32x16_bf16 v[%d:%d], v[%d:%d], v[%d:%d], v[%d:%d]" % (o, o + 15, b + 4 * ch, b + 4 * ch + 3, d, d + 3, o, o + 15))

    a("s_barrier")
    a("s_barrier")
    q = []

    def rd(tag, fn, t, n):
        fn(t)
        q.extend([tag] * n)

    def waitl(tag):
        idx = max(i for i, x in enumerate(q) if x == tag)
        n = len(q) - 1 - idx
        a("s_waitcnt lgkmcnt(%d)" % min(n, 15))

    rd(("kv", 0), kvreads, 0, 2)
    rd(("kv", 1), kvreads, 1, 2)
    rd(("wo", 0), woreads, 0, 4)
    waitl(("kv", 0))
    a("s_waitcnt vmcnt(%d)" % (2 * 15))
    nd(0)
    for t in range(16):
        if t + 2 < 16:
            rd(("kv", t + 2), kvreads, t + 2, 2)
        if t + 1 < 16:
            if (t + 1) % 4 == 0:
                a("s_barrier")
            rd(("wo", t + 1), woreads, t + 1, 4)
            waitl(("kv", t + 1))
            a("s_waitcnt vmcnt(%d)" % (2 * (14 - t)))
            nd(t + 1)
        valu(t)
        waitl(("wo", t))
        outm(t)
    a("s_lshl_b32 s18, s3, 12")
    a("s_add_u32 s18, s18, 0x%x" % L_RED)
    a("v_add_u32 v5, s18, v%d" % VT)
    a("s_xor_b32 s18, s3, 2")
    a("s_lshl_b32 s18, s18, 12")
    a("s_add_u32 s18, s18, 0x%x" % L_RED)
    a("v_add_u32 v6, s18, v%d" % VT)
    a("s_cmp_eq_u32 s11, 0")
    a("s_cbranch_scc1 K2_R0")
    for r in range(16):
        a("v_swap_b32 v%d, v%d" % (OUT + r, OUT + 16 + r))
    a.label("K2_R0")
    for qd in range(4):
        a("ds_write_b128 v5, v[%d:%d] offset:%d" % (OUT + 16 + 4 * qd, OUT + 16 + 4 * qd + 3, 1024 * qd))
    a("s_waitcnt lgkmcnt(0)")
    a("s_barrier")
    for qd in range(4):
        a("ds_read_b128 v[%d:%d], v6 offset:%d" % (D + 4 * qd, D + 4 * qd + 3, 1024 * qd))
    a("v_and_b32 v5, 31, v0")
    a("v_lshrrev_b32 v7, 5, v0")
    a("v_lshlrev_b32 v7, 4, v7")
    a("v_lshl_or_b32 v5, v5, 11, v7")
    a("s_lshl_b32 s18, s%d, 6" % S_RT)
    a("s_lshl_b32 s19, s10, 5")
    a("s_add_u32 s18, s18, s19")
    a("s_lshl_b32 s18, s18, 11")
    a("s_lshl_b32 s19, s%d, 7" % S_CT)
    a("s_add_u32 s18, s18, s19")
    a("s_lshl_b32 s19, s11, 6")
    a("s_add_u32 s18, s18, s19")
    for qd in range(4):
        a("s_waitcnt lgkmcnt(%d)" % (3 - qd))
        for i in range(4):
            r = 4 * qd + i
            a("v_add_f32 v%d, v%d, v%d" % (OUT + r, OUT + r, D + r))
    for k in range(8):
        a("v_cvt_pk_bf16_f32 v%d, v%d, v%d" % (D + 16 + k, OUT + 2 * k, OUT + 2 * k + 1))
    a("buffer_store_dwordx4 v[%d:%d], v5, s[%d:%d], s18 offen" % (D + 16, D + 19, R_OUT, R_OUT + 3))
    a("buffer_store_dwordx4 v[%d:%d], v5, s[%d:%d], s18 offen offset:32" % (D + 20, D + 23, R_OUT, R_OUT + 3))
    a("s_endpgm")

    a.label("K2_HELPER")
    vm = VMQ()
    a("s_sub_u32 s3, s3, 4")
    a("s_and_b32 s10, s3, 1")
    a("s_lshr_b32 s11, s3, 1")
    a("v_lshrrev_b32 v1, 2, v0")
    a("v_and_b32 v2, 3, v0")
    a("v_lshlrev_b32 v2, 4, v2")
    a("v_lshl_or_b32 v3, v1, 16, v2")
    a("s_lshl_b32 s18, s11, 5")
    a("s_add_u32 s18, s18, s%d" % S_T1)
    a("s_lshl_b32 s18, s18, 10")
    a("s_lshl_b32 s19, s%d, 7" % S_J)
    a("s_add_u32 s18, s18, s19")
    a("s_lshl_b32 s19, s10, 6")
    a("s_add_u32 s18, s18, s19")
    a("s_add_u32 s18, s18, 0x%x" % WS_H)
    a("s_lshl_b32 s19, s10, 12")
    a("s_lshl_b32 s20, s11, 11")
    a("s_add_u32 s19, s19, s20")
    a("s_add_u32 m0, s19, 0x%x" % L_H)
    a("s_nop 0")
    a("buffer_load_dwordx4 v3, s[%d:%d], s18 offen lds" % (R_WS, R_WS + 3))
    a("s_add_u32 m0, s19, 0x%x" % (L_H + 1024))
    a("s_add_u32 s18, s18, 0x100000")
    a("buffer_load_dwordx4 v3, s[%d:%d], s18 offen lds" % (R_WS, R_WS + 3))
    vm.issue("h", 2)
    a("s_cmp_eq_u32 s%d, 0" % S_T1)
    a("s_cselect_b32 s12, 1, 0")
    a("s_and_b32 s13, s12, s10")
    a("s_lshl_b32 s14, s13, 5")
    a("s_add_u32 s14, s14, s%d" % S_T1)
    CR0, CI0 = 16, 24
    a("v_and_b32 v4, 31, v0")
    a("v_lshlrev_b32 v5, 6, v4")
    a("v_add_u32 v5, s14, v5")
    a("v_lshrrev_b32 v6, 5, v0")
    a("v_lshlrev_b32 v7, 4, v6")
    a("v_lshl_or_b32 v7, v5, 12, v7")
    for ks in range(2):
        a("buffer_load_dwordx4 v[%d:%d], v7, s[%d:%d], 0 offen offset:%d" % (CR0 + 4 * ks, CR0 + 4 * ks + 3, R_CR, R_CR + 3, 32 * ks))
        a("buffer_load_dwordx4 v[%d:%d], v7, s[%d:%d], 0 offen offset:%d" % (CI0 + 4 * ks, CI0 + 4 * ks + 3, R_CI, R_CI + 3, 32 * ks))
    vm.issue("coef", 4)
    KVR = 128
    a("s_lshl_b32 s18, s3, 10")
    a("v_lshlrev_b32 v8, 4, v0")
    a("v_add_u32 v8, s18, v8")
    a("s_mov_b32 s18, 0")
    for it in range(16):
        a("buffer_load_dwordx4 v[%d:%d], v8, s[%d:%d], s18 offen" % (KVR + 4 * it, KVR + 4 * it + 3, R_WS, R_WS + 3))
        vm.issue(("kv", it))
        a("s_add_u32 s18, s18, 0x1000")
    a("buffer_load_dwordx4 v[%d:%d], v8, s[%d:%d], s18 offen" % (KVR + 64, KVR + 67, R_WS, R_WS + 3))
    vm.issue(("kv", 16))
    a("v_lshl_or_b32 v9, v1, 10, v2")
    a("s_lshl_b32 s15, s11, 18")
    a("s_lshl_b32 s18, s%d, 7" % S_CT)
    a("s_add_u32 s15, s15, s18")
    a("s_lshl_b32 s18, s10, 6")
    a("s_add_u32 s15, s15, s18")
    a("s_lshl_b32 s16, s10, 15")
    a("s_lshl_b32 s18, s11, 14")
    a("s_add_u32 s16, s16, s18")
    for t in range(16):
        a("s_add_u32 m0, s16, 0x%x" % (L_WO + t * 1024))
        a("s_add_u32 s18, s15, 0x%x" % (t * 16384))
        a("buffer_load_dwordx4 v9, s[%d:%d], s18 offen lds" % (R_WO, R_WO + 3))
        vm.issue(("wo", t))
    a("v_and_b32 v10, 3, v1")
    a("v_lshl_or_b32 v10, v6, 3, v10")
    a("v_lshlrev_b32 v10, 6, v10")
    a("v_and_b32 v11, 16, v0")
    a("v_lshl_or_b32 v10, v11, 1, v10")
    a("v_and_b32 v11, 1, v0")
    a("v_lshl_or_b32 v10, v11, 4, v10")
    a("v_and_b32 v11, 2, v0")
    a("v_lshl_or_b32 v10, v11, 2, v10")
    a("s_lshl_b32 s18, s13, 11")
    a("s_add_u32 s18, s18, 0x%x" % L_H)
    a("v_add_u32 v11, s18, v10")
    a("v_add_u32 v12, 0x%x, v10" % (L_H + 2048))
    a("s_xor_b32 s18, s10, s11")
    a("s_cmp_lg_u32 s12, 0")
    a("s_cselect_b32 s18, s11, s18")
    a("s_cmp_eq_u32 s18, 0")
    a("s_cselect_b32 s17, 0x80008000, 0")
    a("v_cmp_eq_u32 vcc, 0, v4")
    a("s_cmp_eq_u32 s%d, 0" % S_J)
    a("s_cselect_b64 s[22:23], vcc, 0")
    a("s_waitcnt vmcnt(%d)" % vm.wait_n("h"))
    a("s_barrier")
    HA, HB = 32, 40
    HA2, HB2 = 48, 56
    ACC = 64
    SC = 80
    NC = 88
    SR = 96

    def hreads(base, addr, ab):
        for ks in range(2):
            for hf in range(2):
                d = base + 4 * ks + 2 * hf
                a("ds_read_b64_tr_b16 v[%d:%d], v%d offset:%d" % (d, d + 1, addr, ab * 4096 + (16 * ks + 4 * hf) * 64))
    hreads(HA, 11, 0)
    hreads(HB, 11, 1)
    hreads(HA2, 12, 0)
    hreads(HB2, 12, 1)
    a("s_waitcnt vmcnt(%d)" % vm.wait_n("coef"))
    a("s_mov_b32 s19, 0x80008000")
    for i in range(8):
        a("v_xor_b32 v%d, s17, v%d" % (SC + i, CI0 + i))
        a("v_xor_b32 v%d, s19, v%d" % (NC + i, CI0 + i))
        a("v_xor_b32 v%d, s17, v%d" % (SR + i, CR0 + i))
    a("s_waitcnt lgkmcnt(0)")
    a("s_cmp_eq_u32 s11, 0")
    a("s_cbranch_scc1 K2_FIXD")
    for i in range(8):
        a("v_cndmask_b32 v%d, v%d, v%d, s[22:23]" % (HA + i, HA + i, HB + i))
        a("v_cndmask_b32 v%d, v%d, v%d, s[22:23]" % (HA2 + i, HA2 + i, HB2 + i))
    a.label("K2_FIXD")
    for i in range(8):
        a("v_cndmask_b32 v%d, v%d, 0, s[22:23]" % (HB + i, HB + i))
        a("v_cndmask_b32 v%d, v%d, 0, s[22:23]" % (HB2 + i, HB2 + i))

    def mf(A, B, first=False):
        c = "0" if first else "v[%d:%d]" % (ACC, ACC + 15)
        a("v_mfma_f32_32x32x16_bf16 v[%d:%d], v[%d:%d], v[%d:%d], %s" % (ACC, ACC + 15, A, A + 3, B, B + 3, c))
    mf(HA, CR0, True)
    mf(HA + 4, CR0 + 4)
    mf(HB, SC)
    mf(HB + 4, SC + 4)
    a("s_cmp_lg_u32 s12, 0")
    a("s_cbranch_scc1 K2_B0DONE")
    mf(HA2, NC)
    mf(HA2 + 4, NC + 4)
    mf(HB2, SR)
    mf(HB2 + 4, SR + 4)
    a.label("K2_B0DONE")
    a("s_andn2_b32 s18, s10, s12")
    a("v_sub_u32 v13, 0x800, v5")
    a("s_cmp_lg_u32 s18, 0")
    a("s_cselect_b64 vcc, -1, 0")
    a("v_cndmask_b32 v13, v5, v13, vcc")
    a("v_lshlrev_b32 v13, 11, v13")
    a("s_cmp_lg_u32 s11, 0")
    a("s_cbranch_scc1 K2_BMIR")
    PK = 104
    for k in range(8):
        a("v_cvt_pk_bf16_f32 v%d, v%d, v%d" % (PK + k, ACC + 2 * k, ACC + 2 * k + 1))
    a("v_lshl_add_u32 v13, v6, 4, v13")
    a("s_lshl_b32 s18, s%d, 6" % S_J)
    a("s_add_u32 s18, s18, 1024")
    a("buffer_store_dwordx4 v[%d:%d], v13, s[%d:%d], s18 offen" % (PK, PK + 3, R_OUT, R_OUT + 3))
    a("buffer_store_dwordx4 v[%d:%d], v13, s[%d:%d], s18 offen offset:32" % (PK + 4, PK + 7, R_OUT, R_OUT + 3))
    a("s_branch K2_BDONE")
    a.label("K2_BMIR")
    for g in range(2):
        x = ACC + 8 * g
        p = PK + 4 * g
        a("v_cvt_pk_bf16_f32 v%d, v%d, v%d" % (p, x + 6, x + 5))
        a("v_cvt_pk_bf16_f32 v%d, v%d, v%d" % (p + 1, x + 4, x + 3))
        a("v_cvt_pk_bf16_f32 v%d, v%d, v%d" % (p + 2, x + 2, x + 1))
        a("v_cvt_pk_bf16_f32 v%d, v%d, v%d" % (p + 3, x + 7, x + 0))
    a("v_xor_b32 v14, 1, v6")
    a("v_lshl_add_u32 v14, v14, 4, v13")
    a("s_lshl_b32 s18, s%d, 6" % S_J)
    a("s_sub_u32 s18, %d, s18" % (2048 - 14 - 32 - 16))
    for g in range(2):
        p = PK + 4 * g
        off = 32 * (1 - g)
        a("buffer_store_short v%d, v14, s[%d:%d], s18 offen offset:%d" % (p + 3, R_OUT, R_OUT + 3, off))
        a("buffer_store_dwordx3 v[%d:%d], v14, s[%d:%d], s18 offen offset:%d" % (p, p + 2, R_OUT, R_OUT + 3, off + 2))
    a("buffer_store_short_d16_hi v%d, v14, s[%d:%d], s18 offen offset:14" % (PK + 7, R_OUT, R_OUT + 3))
    a("v_add_u32 v15, s18, v14")
    a("v_add_u32 v15, 46, v15")
    a("v_add_u32 v14, 0x600, v13")
    a("v_cmp_gt_u32 vcc, 32, v0")
    a("s_cmp_eq_u32 s%d, 0" % S_J)
    a("s_cselect_b64 vcc, vcc, 0")
    a("v_cndmask_b32 v15, v15, v14, vcc")
    a("buffer_store_short_d16_hi v%d, v15, s[%d:%d], 0 offen" % (PK + 3, R_OUT, R_OUT + 3))
    a.label("K2_BDONE")
    vm.issue("bst", 2)
    a("v_lshrrev_b32 v10, 4, v0")
    a("v_and_b32 v10, 3, v10")
    a("v_lshrrev_b32 v11, 3, v0")
    a("v_and_b32 v11, 1, v11")
    a("v_lshl_or_b32 v10, v11, 3, v10")
    a("s_lshl_b32 s18, s10, 2")
    a("v_add_u32 v10, s18, v10")
    a("v_lshlrev_b32 v10, 4, v10")
    a("v_lshrrev_b32 v11, 2, v0")
    a("v_and_b32 v11, 1, v11")
    a("v_mul_u32_u24 v11, 544, v11")
    a("v_add_u32 v10, v10, v11")
    a("v_lshrrev_b32 v11, 1, v0")
    a("v_and_b32 v11, 1, v11")
    a("v_mul_u32_u24 v11, 272, v11")
    a("v_add_u32 v10, v10, v11")
    a("v_and_b32 v11, 1, v0")
    a("v_lshl_add_u32 v10, v11, 3, v10")
    a("s_mul_i32 s18, s11, 1088")
    a("s_add_u32 s18, s18, 0x%x" % L_KV)
    a("v_add_u32 v10, s18, v10")
    a("s_lshl_b32 s18, s3, 3")
    a("v_lshrrev_b32 v11, 3, v0")
    a("v_add_u32 v11, s18, v11")
    a("v_mul_u32_u24 v11, 1088, v11")
    a("v_lshrrev_b32 v12, 2, v0")
    a("v_and_b32 v12, 1, v12")
    a("v_mul_u32_u24 v12, 544, v12")
    a("v_add_u32 v11, v11, v12")
    a("v_lshrrev_b32 v12, 1, v0")
    a("v_and_b32 v12, 1, v12")
    a("v_mul_u32_u24 v12, 272, v12")
    a("v_add_u32 v11, v11, v12")
    a("v_and_b32 v12, 1, v0")
    a("v_lshl_add_u32 v11, v12, 3, v11")
    a("v_add_u32 v11, 0x%x, v11" % (L_KV + 256))
    for it in range(17):
        r = KVR + 4 * it
        a("s_waitcnt vmcnt(%d)" % vm.wait_n(("kv", it)))
        a("v_cvt_pk_bf16_f32 v%d, v%d, v%d" % (r, r, r + 1))
        a("v_cvt_pk_bf16_f32 v%d, v%d, v%d" % (r + 1, r + 2, r + 3))
        if it < 16:
            a("ds_write_b64 v10, v[%d:%d] offset:%d" % (r, r + 1, it * 2 * 1088))
        else:
            a("ds_write_b64 v11, v[%d:%d]" % (r, r + 1))
    a("s_waitcnt lgkmcnt(0)")
    for ph in range(4):
        a("s_waitcnt vmcnt(%d)" % vm.wait_n(("wo", 4 * ph + 3)))
        a("s_barrier")
    a.label("K2_END")
    a("s_endpgm")
```

```python
import sys
from dsl import Asm, vr, sr

NAME = "concat_heads__linear_kernel_hedgehog__spectral_fnet__prompt"

WS_KV = 0
WS_Z = 65536
WS_PHI = 1 << 20
WS_H = 8 << 20
WS_SIZE = 16 << 20

LOG2E = 0x3FB8AA3B
NLOG2E = 0xBFB8AA3B

SLOT = 32768


class VMQ:
    def __init__(self):
        self.q = []

    def issue(self, tag, n=1):
        self.q += [tag] * n

    def wait_n(self, tag):
        idx = max(i for i, t in enumerate(self.q) if t == tag)
        return len(self.q) - 1 - idx


def srd(a, d, lo, nbytes):
    a("s_mov_b32 s%d, s%d" % (d, lo))
    a("s_mov_b32 s%d, s%d" % (d + 1, lo + 1))
    a("s_mov_b32 s%d, 0x%x" % (d + 2, nbytes))
    a("s_mov_b32 s%d, 0x00020000" % (d + 3))


P_X, P_W, P_WP, P_WO, P_XB, P_CR, P_CI, P_DR = 32, 34, 36, 38, 40, 42, 44, 46
P_DI, P_OUT, P_DBG, P_WS = 48, 50, 52, 54
R_X, R_W, R_XB, R_DR, R_DI, R_WS, R_CR, R_CI, R_WP, R_WO, R_OUT = 56, 60, 64, 68, 72, 76, 80, 84, 88, 92, 96


def load_ptrs(a):
    a("s_load_dwordx16 s[32:47], s[0:1], 0")
    a("s_load_dwordx8 s[48:55], s[0:1], 64")


def softmax_units(a, X, T, P):
    for r in range(0, 16, 2):
        t = T + r // 2
        a("v_cvt_pk_bf16_f32 v%d, v%d, v%d" % (t, X + r, X + r + 1))
    for r in range(0, 16, 2):
        t = T + r // 2
        a("v_lshlrev_b32 v%d, 16, v%d" % (X + r, t))
        a("v_and_b32 v%d, 0xffff0000, v%d" % (X + r + 1, t))
    MX = [T + 0, T + 1]
    MN = [T + 2, T + 3]
    TX = [T + 4, T + 5]
    TN = [T + 6, T + 7]
    for hd in range(2):
        x = X + 8 * hd
        a("v_max3_f32 v%d, v%d, v%d, v%d" % (MX[hd], x, x + 1, x + 2))
        a("v_min3_f32 v%d, v%d, v%d, v%d" % (MN[hd], x, x + 1, x + 2))
    for k in (3, 5):
        for hd in range(2):
            x = X + 8 * hd
            a("v_max3_f32 v%d, v%d, v%d, v%d" % (MX[hd], MX[hd], x + k, x + k + 1))
            a("v_min3_f32 v%d, v%d, v%d, v%d" % (MN[hd], MN[hd], x + k, x + k + 1))
    for hd in range(2):
        x = X + 8 * hd
        a("v_max_f32 v%d, v%d, v%d" % (MX[hd], MX[hd], x + 7))
        a("v_min_f32 v%d, v%d, v%d" % (MN[hd], MN[hd], x + 7))
    for hd in range(2):
        a("v_mov_b32 v%d, v%d" % (TX[hd], MX[hd]))
        a("v_mov_b32 v%d, v%d" % (TN[hd], MN[hd]))
    for hd in range(2):
        a("v_permlane32_swap_b32 v%d, v%d" % (MX[hd], TX[hd]))
        a("v_permlane32_swap_b32 v%d, v%d" % (MN[hd], TN[hd]))
    for hd in range(2):
        a("v_max_f32 v%d, v%d, v%d" % (MX[hd], MX[hd], TX[hd]))
        a("v_min_f32 v%d, v%d, v%d" % (MN[hd], MN[hd], TN[hd]))
    for hd in range(2):
        a("v_mul_f32 v%d, s29, v%d" % (MX[hd], MX[hd]))
        a("v_mul_f32 v%d, s28, v%d" % (MN[hd], MN[hd]))
    EM = T + 8
    for r in range(16):
        hd = r >> 3
        a("v_fma_f32 v%d, v%d, s29, v%d" % (EM + r, X + r, MN[hd]))
        a("v_fma_f32 v%d, v%d, s28, v%d" % (X + r, X + r, MX[hd]))
    for r in range(16):
        a("v_exp_f32 v%d, v%d" % (EM + r, EM + r))
        a("v_exp_f32 v%d, v%d" % (X + r, X + r))
    SP = [T + 0, T + 1]
    SM = [T + 2, T + 3]
    for hd in range(2):
        a("v_add_f32 v%d, v%d, v%d" % (SP[hd], X + 8 * hd, X + 8 * hd + 1))
        a("v_add_f32 v%d, v%d, v%d" % (SM[hd], EM + 8 * hd, EM + 8 * hd + 1))
        a("v_add_f32 v%d, v%d, v%d" % (TX[hd], X + 8 * hd + 2, X + 8 * hd + 3))
        a("v_add_f32 v%d, v%d, v%d" % (TN[hd], EM + 8 * hd + 2, EM + 8 * hd + 3))
    for k in (4, 6):
        for hd in range(2):
            a("v_add_f32 v%d, v%d, v%d" % (SP[hd], SP[hd], X + 8 * hd + k))
            a("v_add_f32 v%d, v%d, v%d" % (SM[hd], SM[hd], EM + 8 * hd + k))
            a("v_add_f32 v%d, v%d, v%d" % (TX[hd], TX[hd], X + 8 * hd + k + 1))
            a("v_add_f32 v%d, v%d, v%d" % (TN[hd], TN[hd], EM + 8 * hd + k + 1))
    for hd in range(2):
        a("v_add_f32 v%d, v%d, v%d" % (SP[hd], SP[hd], TX[hd]))
        a("v_add_f32 v%d, v%d, v%d" % (SM[hd], SM[hd], TN[hd]))
    for hd in range(2):
        a("v_mov_b32 v%d, v%d" % (TX[hd], SP[hd]))
        a("v_mov_b32 v%d, v%d" % (TN[hd], SM[hd]))
    for hd in range(2):
        a("v_permlane32_swap_b32 v%d, v%d" % (SP[hd], TX[hd]))
        a("v_permlane32_swap_b32 v%d, v%d" % (SM[hd], TN[hd]))
    for hd in range(2):
        a("v_add_f32 v%d, v%d, v%d" % (SP[hd], SP[hd], TX[hd]))
        a("v_add_f32 v%d, v%d, v%d" % (SM[hd], SM[hd], TN[hd]))
    for hd in range(2):
        a("v_rcp_f32 v%d, v%d" % (SP[hd], SP[hd]))
        a("v_rcp_f32 v%d, v%d" % (SM[hd], SM[hd]))
    for r in range(16):
        hd = r >> 3
        a("v_mul_f32 v%d, v%d, v%d" % (X + r, X + r, SP[hd]))
        a("v_mul_f32 v%d, v%d, v%d" % (EM + r, EM + r, SM[hd]))
    for hd in range(2):
        for d in range(4):
            a("v_cvt_pk_bf16_f32 v%d, v%d, v%d" % (P + 8 * hd + d, X + 8 * hd + 2 * d, X + 8 * hd + 2 * d + 1))
            a("v_cvt_pk_bf16_f32 v%d, v%d, v%d" % (P + 8 * hd + 4 + d, EM + 8 * hd + 2 * d, EM + 8 * hd + 2 * d + 1))


def wphi_frags(a, vm, LANE, WF, A1, A2, T, s_hp):
    a("v_and_b32 v%d, 31, v%d" % (T, LANE))
    a("v_lshrrev_b32 v%d, 5, v%d" % (T + 1, LANE))
    a("v_and_b32 v%d, 3, v%d" % (T + 2, T))
    a("v_and_b32 v%d, 4, v%d" % (T + 3, T))
    a("v_lshl_or_b32 v%d, v%d, 1, v%d" % (T + 2, T + 3, T + 2))
    a("v_and_b32 v%d, 8, v%d" % (T + 3, T))
    a("v_lshrrev_b32 v%d, 1, v%d" % (T + 3, T + 3))
    a("v_or_b32 v%d, v%d, v%d" % (T + 2, T + 2, T + 3))
    a("v_lshrrev_b32 v%d, 4, v%d" % (T + 3, T))
    a("v_lshl_or_b32 v%d, v%d, 8, v%d" % (T + 2, T + 3, T + 2))
    a("v_lshl_or_b32 v%d, v%d, 7, v%d" % (T + 2, T + 1, T + 2))
    a("v_lshlrev_b32 v%d, 1, v%d" % (T + 2, T + 2))
    a("s_lshl_b32 s27, s%d, 10" % s_hp)
    for j in range(8):
        a("buffer_load_ushort v%d, v%d, s[%d:%d], s27 offen offset:%d" % (WF + j, T + 2, R_WP, R_WP + 3, j * 32))
    vm.issue("wphi", 8)
    return T


def wphi_finish(a, WF, A1, A2, Ti):
    for d in range(4):
        a("v_lshl_or_b32 v%d, v%d, 16, v%d" % (WF + d * 2, WF + 2 * d + 1, WF + 2 * d))
    a("v_cmp_gt_u32 vcc, 16, v%d" % Ti)
    for d in range(4):
        a("v_cndmask_b32 v%d, 0, v%d, vcc" % (A1 + d, WF + 2 * d))
        a("v_cndmask_b32 v%d, v%d, 0, vcc" % (A2 + d, WF + 2 * d))


def gen_k1(a):
    K = "k1_kernel"
    a.raw(".globl %s\n.p2align 8\n.type %s,@function\n%s:" % (K, K, K))
    a("s_cmp_ge_u32 s2, 256")
    a("s_cbranch_scc1 K1_END")
    load_ptrs(a)
    a("v_lshrrev_b32 v1, 6, v0")
    a("v_and_b32 v0, 63, v0")
    a("v_readfirstlane_b32 s3, v1")
    a("s_and_b32 s4, s2, 7")
    a("s_lshr_b32 s5, s2, 3")
    a("s_lshr_b32 s6, s5, 3")
    a("s_and_b32 s7, s5, 7")
    a("s_lshr_b32 s8, s4, 1")
    a("s_lshl_b32 s8, s8, 2")
    a("s_add_u32 s8, s8, s6")
    a("s_and_b32 s9, s4, 1")
    a("s_lshl_b32 s9, s9, 3")
    a("s_add_u32 s9, s9, s7")
    a("s_lshl_b32 s10, s4, 2")
    a("s_add_u32 s10, s10, s6")
    a("s_mov_b32 s28, 0x%x" % LOG2E)
    a("s_mov_b32 s29, 0x%x" % NLOG2E)
    a("s_waitcnt lgkmcnt(0)")
    srd(a, R_X, P_X, 2048 * 1024)
    srd(a, R_W, P_W, 512 * 3072)
    srd(a, R_XB, P_XB, 2048 * 1024)
    srd(a, R_DR, P_DR, 512 * 1024)
    srd(a, R_DI, P_DI, 512 * 1024)
    srd(a, R_WS, P_WS, WS_SIZE)
    srd(a, R_CR, P_CR, 2048 * 4096)
    srd(a, R_CI, P_CI, 2048 * 4096)
    srd(a, R_WP, P_WP, 32 * 512)
    a("s_cmp_ge_u32 s3, 4")
    a("s_cbranch_scc1 K1_HELPER")
    S_RT, S_HP, S_S2, S_J = 8, 9, 10, 7

    vm = VMQ()
    LANE = 0
    XA = 2
    WQ = 14
    WV = 17
    A1, A2 = 20, 24
    I0, I1 = 28, 32
    VI = 36
    VF = 37
    VZ = 38
    ACQ, ACK, ACV = 40, 56, 72
    FR = 88
    T = 152
    a("s_getpc_b64 s[12:13]")
    a("v_lshlrev_b32 v%d, 6, v0" % T)
    NPF = 6
    for i in range(NPF):
        a("global_load_dword v%d, v%d, s[12:13] offset:0" % (T + 1 + i, T))
        if i != NPF - 1:
            a("v_add_u32 v%d, 0x1000, v%d" % (T, T))
    vm.issue("pf", NPF)
    a("s_or_b32 s14, s%d, s3" % S_RT)
    a("v_mov_b32 v%d, 0" % VZ)
    a("s_lshl_b32 s15, s%d, 3" % S_HP)
    a("s_add_u32 s16, s%d, s15" % P_DBG)
    a("s_addc_u32 s17, s%d, 0" % (P_DBG + 1))
    a("s_cmp_lg_u32 s14, 0")
    a("s_cbranch_scc1 K1_NOCLAIM")
    a("v_mov_b32 v%d, 1" % (T + 10))
    a("s_mov_b64 exec, 1")
    a("global_atomic_add v%d, v%d, v%d, s[16:17] sc0" % (T + 11, VZ, T + 10))
    a("s_mov_b64 exec, -1")
    a.label("K1_NOCLAIM")
    WF = T + 12
    wphi_frags(a, vm, LANE, WF, A1, A2, T + 20, S_HP)
    a("v_mov_b32 v%d, v%d" % (VI, T + 20))
    t0, t1, t2 = T + 24, T + 25, T + 26
    a("v_lshrrev_b32 v%d, 5, v0" % t0)
    a("s_lshl_b32 s18, s3, 5")
    a("v_add_u32 v%d, s18, v%d" % (t1, VI))
    a("v_lshrrev_b32 v%d, 1, v%d" % (t2, t1))
    a("v_and_b32 v%d, 7, v%d" % (t2, t2))
    a("v_xor_b32 v%d, v%d, v%d" % (t2, t2, t0))
    a("v_lshlrev_b32 v%d, 4, v%d" % (t2, t2))
    a("v_lshl_or_b32 v%d, v%d, 7, v%d" % (XA, t1, t2))
    for k in range(1, 4):
        a("v_xor_b32 v%d, 0x%x, v%d" % (XA + k, 32 * k, XA))
    for g in range(1, 3):
        for k in range(4):
            a("v_add_u32 v%d, 0x%x, v%d" % (XA + 4 * g + k, 65536 * g, XA + k))
    a("v_lshrrev_b32 v%d, 2, v0" % t1)
    a("v_and_b32 v%d, 3, v%d" % (t1, t1))
    a("v_lshl_or_b32 v%d, v%d, 3, v%d" % (t1, t0, t1))
    a("v_lshlrev_b32 v%d, 6, v%d" % (t1, t1))
    a("v_and_b32 v%d, 16, v0" % t2)
    a("v_lshl_or_b32 v%d, v%d, 1, v%d" % (t1, t2, t1))
    a("v_and_b32 v%d, 3, v0" % t2)
    a("v_lshl_or_b32 v%d, v%d, 3, v%d" % (WV, t2, t1))
    a("v_and_b32 v%d, 1, v0" % t2)
    a("v_lshl_or_b32 v%d, v%d, 4, v%d" % (WQ, t2, t1))
    a("v_and_b32 v%d, 2, v0" % t2)
    a("v_lshl_or_b32 v%d, v%d, 2, v%d" % (WQ, t2, WQ))
    for g in range(1, 3):
        a("v_add_u32 v%d, 0x%x, v%d" % (WQ + g, 65536 * g, WQ))
        a("v_add_u32 v%d, 0x%x, v%d" % (WV + g, 65536 * g, WV))
    a("v_lshlrev_b32 v%d, 3, v%d" % (t1, t0))
    a("v_sub_u32 v%d, v%d, v%d" % (t1, VI, t1))
    for ks, I in ((0, I0), (1, I1)):
        if ks:
            a("v_subrev_u32 v%d, 16, v%d" % (t1, t1))
        a("v_and_b32 v%d, 1, v%d" % (t2, t1))
        a("v_lshlrev_b32 v%d, 4, v%d" % (t2, t2))
        a("v_mov_b32 v%d, 0x3f80" % t0)
        a("v_lshlrev_b32 v%d, v%d, v%d" % (t2, t2, t0))
        a("v_ashrrev_i32 v%d, 1, v%d" % (t0, t1))
        for d in range(4):
            a("v_cmp_eq_u32 vcc, %d, v%d" % (d, t0))
            a("v_cndmask_b32 v%d, 0, v%d, vcc" % (I + d, t2))
    for r in range(48):
        a("v_mov_b32 v%d, 0" % (ACQ + r))

    def reads(g):
        c, k = g >> 2, g & 3
        slot = c % 5
        grp, off = slot >> 1, (slot & 1) * SLOT
        b = FR + (g & 3) * 16
        a("ds_read_b128 v[%d:%d], v%d offset:%d" % (b, b + 3, XA + 4 * grp + k, off))
        for p in range(3):
            areg = (WQ if p < 2 else WV) + grp
            for hf in range(2):
                o = off + 16384 + p * 4096 + (16 * k + 4 * hf) * 64
                d = b + 4 + p * 4 + hf * 2
                a("ds_read_b64_tr_b16 v[%d:%d], v%d offset:%d" % (d, d + 1, areg, o))

    def mfmas(g):
        b = FR + (g & 3) * 16
        a("v_mfma_f32_32x32x16_bf16 v[%d:%d], v[%d:%d], v[%d:%d], v[%d:%d]" % (ACQ, ACQ + 15, b + 4, b + 7, b, b + 3, ACQ, ACQ + 15))
        a("v_mfma_f32_32x32x16_bf16 v[%d:%d], v[%d:%d], v[%d:%d], v[%d:%d]" % (ACK, ACK + 15, b + 8, b + 11, b, b + 3, ACK, ACK + 15))
        a("v_mfma_f32_32x32x16_bf16 v[%d:%d], v[%d:%d], v[%d:%d], v[%d:%d]" % (ACV, ACV + 15, b, b + 3, b + 12, b + 15, ACV, ACV + 15))

    a("s_barrier")
    for g in range(3):
        reads(g)
    for g in range(32):
        issued_after = min(31, g + 2) - g
        a("s_waitcnt lgkmcnt(%d)" % (7 * issued_after))
        mfmas(g)
        if g + 3 < 32:
            if (g + 3) % 4 == 0:
                a("s_waitcnt lgkmcnt(0)")
                a("s_barrier")
            reads(g + 3)
        if g == 2:
            a("s_waitcnt vmcnt(0)")
            wphi_finish(a, WF, A1, A2, VI)
        if g == 6:
            a("s_cmp_lg_u32 s14, 0")
            a("s_cbranch_scc1 K1_NOZERO")
            a("s_waitcnt vmcnt(0)")
            a("v_readfirstlane_b32 s19, v%d" % (T + 11))
            a("s_mov_b32 s20, 1")
            a("s_cmp_lg_u32 s19, 0")
            a("s_cbranch_scc1 K1_NOZERO")
            a("s_mov_b32 s20, 0")
            zero_kv(a, T + 30, VZ, S_HP)
            a.label("K1_NOZERO")
        if g == 14:
            a("s_cmp_lg_u32 s14, 0")
            a("s_cbranch_scc1 K1_NOFLAG")
            a("s_cmp_lg_u32 s20, 0")
            a("s_cbranch_scc1 K1_NOFLAG")
            a("s_waitcnt vmcnt(0)")
            a("v_mov_b32 v%d, 1" % (T + 10))
            a("s_mov_b64 exec, 1")
            a("global_atomic_add v%d, v%d, s[16:17] offset:4" % (VZ, T + 10))
            a("s_mov_b64 exec, -1")
            a.label("K1_NOFLAG")
        if g == 28:
            a("global_load_dword v%d, v%d, s[16:17] offset:4 sc1" % (VF, VZ))

    QF = FR
    KF = FR + 8
    VFm = FR + 16
    DP = FR + 32
    PH = FR + 48
    slot2 = 2 * SLOT
    for d in range(8):
        a("v_cvt_pk_bf16_f32 v%d, v%d, v%d" % (QF + d, ACQ + 2 * d, ACQ + 2 * d + 1))
    a("s_lshl_b32 s18, s3, 12")
    a("s_add_u32 s18, s18, 0x%x" % slot2)
    a("v_lshlrev_b32 v%d, 4, v0" % T)
    a("v_add_u32 v%d, s18, v%d" % (T, T))
    a("ds_write_b128 v%d, v[%d:%d]" % (T, QF, QF + 3))
    a("ds_write_b128 v%d, v[%d:%d] offset:1024" % (T, QF + 4, QF + 7))
    for d in range(8):
        a("v_cvt_pk_bf16_f32 v%d, v%d, v%d" % (KF + d, ACK + 2 * d, ACK + 2 * d + 1))
    a("s_waitcnt lgkmcnt(0)")
    a("s_barrier")
    a("v_mfma_f32_32x32x16_bf16 v[%d:%d], v[%d:%d], v[%d:%d], 0" % (DP, DP + 15, A1, A1 + 3, KF, KF + 3))
    a("v_mfma_f32_32x32x16_bf16 v[%d:%d], v[%d:%d], v[%d:%d], v[%d:%d]" % (DP, DP + 15, A2, A2 + 3, KF + 4, KF + 7, DP, DP + 15))
    for d in range(8):
        a("v_cvt_pk_bf16_f32 v%d, v%d, v%d" % (VFm + d, ACV + 2 * d, ACV + 2 * d + 1))
    AV0, AV1 = ACQ, ACQ + 8
    a("v_cmp_gt_u32 vcc, 16, v%d" % VI)
    a("v_mov_b32 v%d, 0x3f803f80" % (T + 1))
    for d in range(8):
        a("v_cndmask_b32 v%d, v%d, v%d, vcc" % (AV0 + d, T + 1, VFm + d))
        a("v_cndmask_b32 v%d, v%d, v%d, vcc" % (AV1 + d, VFm + d, T + 1))
    softmax_units(a, DP, T + 2, PH)
    for hd, D in ((0, ACK), (1, ACV)):
        p = PH + 8 * hd
        a("v_mfma_f32_32x32x16_bf16 v[%d:%d], v[%d:%d], v[%d:%d], 0" % (D, D + 15, p, p + 3, I0, I0 + 3))
        a("v_mfma_f32_32x32x16_bf16 v[%d:%d], v[%d:%d], v[%d:%d], v[%d:%d]" % (D, D + 15, p + 4, p + 7, I1, I1 + 3, D, D + 15))
    BK = FR
    for hd, D in ((0, ACK), (1, ACV)):
        for d in range(8):
            a("v_cvt_pk_bf16_f32 v%d, v%d, v%d" % (BK + 8 * hd + d, D + 2 * d, D + 2 * d + 1))
    KV0, KV1 = FR + 16, FR + 32
    for hd, D, AV in ((0, KV0, AV0), (1, KV1, AV1)):
        b = BK + 8 * hd
        a("v_mfma_f32_32x32x16_bf16 v[%d:%d], v[%d:%d], v[%d:%d], 0" % (D, D + 15, AV, AV + 3, b, b + 3))
        a("v_mfma_f32_32x32x16_bf16 v[%d:%d], v[%d:%d], v[%d:%d], v[%d:%d]" % (D, D + 15, AV + 4, AV + 7, b + 4, b + 7, D, D + 15))
    a("s_lshl_b32 s18, s3, 12")
    a("s_add_u32 s18, s18, 0x%x" % (slot2 + 16384))
    a("v_lshlrev_b32 v%d, 4, v0" % T)
    a("v_add_u32 v%d, s18, v%d" % (T + 1, T))
    a("ds_write_b128 v%d, v[%d:%d]" % (T + 1, KV0, KV0 + 3))
    a("ds_write_b128 v%d, v[%d:%d] offset:1024" % (T + 1, KV0 + 4, KV0 + 7))
    a("ds_write_b128 v%d, v[%d:%d] offset:2048" % (T + 1, KV1 + 8, KV1 + 11))
    a("ds_write_b128 v%d, v[%d:%d] offset:3072" % (T + 1, KV1 + 12, KV1 + 15))
    a("v_cmp_gt_u32 vcc, 32, v0")
    a("v_cndmask_b32 v%d, v%d, v%d, vcc" % (T + 2, KV1, KV0 + 8))
    a("s_lshl_b32 s18, s3, 12")
    a("s_add_u32 s18, s18, 0x%x" % (slot2 + 2048))
    a("v_lshlrev_b32 v%d, 2, v0" % (T + 3))
    a("v_add_u32 v%d, s18, v%d" % (T + 4, T + 3))
    a("ds_write_b32 v%d, v%d" % (T + 4, T + 2))
    a("s_waitcnt lgkmcnt(0)")
    a("s_barrier")
    a("s_lshl_b32 s18, s3, 10")
    a("s_add_u32 s18, s18, 0x%x" % (slot2 + 16384))
    a("v_add_u32 v%d, s18, v%d" % (T + 1, T))
    RB = FR
    for ww in range(4):
        a("ds_read_b128 v[%d:%d], v%d offset:%d" % (RB + 4 * ww, RB + 4 * ww + 3, T + 1, 4096 * ww))
    a("v_add_u32 v%d, 0x%x, v%d" % (T + 4, slot2 + 2048, T + 3))
    for ww in range(4):
        a("ds_read_b32 v%d, v%d offset:%d" % (RB + 16 + ww, T + 4, 4096 * ww))
    a("s_mov_b32 s21, 0")
    a.label("K1_POLL")
    a("s_waitcnt vmcnt(0)")
    a("v_readfirstlane_b32 s19, v%d" % VF)
    a("s_cmp_lg_u32 s19, 0")
    a("s_cbranch_scc1 K1_POLLDONE")
    a("s_add_u32 s21, s21, 1")
    a("s_cmp_lg_u32 s21, 4000")
    a("s_cbranch_scc1 K1_POLLMORE")
    a("v_mov_b32 v%d, 1" % (T + 10))
    a("s_mov_b64 exec, 1")
    a("global_atomic_add v%d, v%d, v%d, s[16:17] sc0" % (T + 11, VZ, T + 10))
    a("s_waitcnt vmcnt(0)")
    a("s_mov_b64 exec, -1")
    a("v_readfirstlane_b32 s19, v%d" % (T + 11))
    a("s_cmp_lg_u32 s19, 0")
    a("s_cbranch_scc1 K1_POLLMORE")
    zero_kv(a, T + 30, VZ, S_HP)
    a("s_waitcnt vmcnt(0)")
    a("s_mov_b64 exec, 1")
    a("global_atomic_add v%d, v%d, s[16:17] offset:4" % (VZ, T + 10))
    a("s_mov_b64 exec, -1")
    a.label("K1_POLLMORE")
    a("s_sleep 8")
    a("global_load_dword v%d, v%d, s[16:17] offset:4 sc1" % (VF, VZ))
    a("s_branch K1_POLL")
    a.label("K1_POLLDONE")
    a("s_waitcnt lgkmcnt(0)")
    for i in range(4):
        a("v_add_f32 v%d, v%d, v%d" % (RB + i, RB + i, RB + 4 + i))
        a("v_add_f32 v%d, v%d, v%d" % (RB + 8 + i, RB + 8 + i, RB + 12 + i))
    a("v_add_f32 v%d, v%d, v%d" % (RB + 16, RB + 16, RB + 17))
    a("v_add_f32 v%d, v%d, v%d" % (RB + 18, RB + 18, RB + 19))
    for i in range(4):
        a("v_add_f32 v%d, v%d, v%d" % (RB + i, RB + i, RB + 8 + i))
    a("v_add_f32 v%d, v%d, v%d" % (RB + 16, RB + 16, RB + 18))
    a("s_lshl_b32 s18, s%d, 12" % S_HP)
    a("s_lshl_b32 s19, s3, 10")
    a("s_add_u32 s18, s18, s19")
    for i in range(4):
        a("buffer_atomic_add_f32 v%d, v%d, s[%d:%d], s18 offen offset:%d" % (RB + i, T + 3, R_WS, R_WS + 3, 256 * i))
    a("s_cmp_lg_u32 s3, 0")
    a("s_cbranch_scc1 K1_END")
    a("s_lshl_b32 s18, s%d, 8" % S_HP)
    a("s_add_u32 s18, s18, 0x%x" % WS_Z)
    a("buffer_atomic_add_f32 v%d, v%d, s[%d:%d], s18 offen" % (RB + 16, T + 3, R_WS, R_WS + 3))
    a("s_endpgm")

    a.label("K1_HELPER")
    vm = VMQ()
    a("s_sub_u32 s3, s3, 4")
    VX, VW, VB, VD = 1, 2, 3, 4
    t0, t1, t2 = 10, 11, 12
    a("s_and_b32 s18, s3, 1")
    a("s_lshl_b32 s18, s18, 2")
    a("v_lshrrev_b32 v%d, 4, v0" % t0)
    a("v_add_u32 v%d, s18, v%d" % (t1, t0))
    a("v_and_b32 v%d, 7, v%d" % (t1, t1))
    a("v_and_b32 v%d, 7, v0" % t2)
    a("v_xor_b32 v%d, v%d, v%d" % (t1, t1, t2))
    a("v_lshlrev_b32 v%d, 4, v%d" % (t1, t1))
    a("v_lshrrev_b32 v%d, 3, v0" % t2)
    a("v_lshl_or_b32 v%d, v%d, 10, v%d" % (VX, t2, t1))
    a("v_lshrrev_b32 v%d, 2, v0" % t1)
    a("v_mul_u32_u24 v%d, 0xc00, v%d" % (t1, t1))
    a("v_and_b32 v%d, 3, v0" % t2)
    a("v_lshl_or_b32 v%d, v%d, 4, v%d" % (VW, t2, t1))
    a("s_lshl_b32 s12, s%d, 17" % S_RT)
    a("s_lshl_b32 s18, s3, 13")
    a("s_add_u32 s12, s12, s18")
    a("s_mul_i32 s13, s3, 0xc000")
    a("s_lshl_b32 s18, s%d, 6" % S_HP)
    a("s_add_u32 s13, s13, s18")
    a("s_lshl_b32 s14, s3, 10")

    def stageA(c):
        slot = (c % 5) * SLOT
        for m in range(4):
            a("s_add_u32 m0, s14, 0x%x" % (slot + m * 4096))
            a("s_add_u32 s18, s12, 0x%x" % (m * 32768 + c * 128))
            a("buffer_load_dwordx4 v%d, s[%d:%d], s18 offen lds" % (VX, R_X, R_X + 3))
        for p in range(3):
            a("s_add_u32 m0, s14, 0x%x" % (slot + 16384 + p * 4096))
            a("s_add_u32 s18, s13, 0x%x" % (c * 64 * 3072 + p * 1024))
            a("buffer_load_dwordx4 v%d, s[%d:%d], s18 offen lds" % (VW, R_W, R_W + 3))
        vm.issue(("c", c), 7)

    uid = [0]

    def stageB(c):
        cb = c - 8
        slot = (c % 5) * SLOT
        for m in range(4):
            a("s_add_u32 m0, s14, 0x%x" % (slot + m * 4096))
            a("s_add_u32 s18, s15, 0x%x" % (m * 512 * 1024 + cb * 256))
            a("buffer_load_dwordx4 v%d, s[%d:%d], s18 offen lds" % (VB, R_XB, R_XB + 3))
        for m in range(4):
            a("s_add_u32 m0, s14, 0x%x" % (slot + 16384 + m * 4096))
            a("s_add_u32 s18, s16, 0x%x" % ((m & 1) * 16384 + cb * 256))
            R = R_DR if m < 2 else R_DI
            if m == 2:
                uid[0] += 1
                L1, L2 = "K1_SP%d" % uid[0], "K1_SPE%d" % uid[0]
                a("s_cmp_eq_u32 s17, 0")
                a("s_cbranch_scc1 %s" % L1)
                a("buffer_load_dwordx4 v%d, s[%d:%d], s18 offen lds" % (VD, R, R + 3))
                a("s_branch %s" % L2)
                a.label(L1)
                a("s_mov_b64 exec, 0xffff")
                a("s_mov_b32 s19, 0x%x" % (256 * 1024 + cb * 256))
                a("buffer_load_dwordx4 v%d, s[%d:%d], s19 offen lds" % (VD, R_DR, R_DR + 3))
                a("s_not_b64 exec, exec")
                a("buffer_load_dwordx4 v%d, s[%d:%d], s18 offen lds" % (VD, R, R + 3))
                a("s_mov_b64 exec, -1")
                a.label(L2)
            else:
                a("buffer_load_dwordx4 v%d, s[%d:%d], s18 offen lds" % (VD, R, R + 3))
        vm.issue(("c", c), 8)

    for c in range(2):
        stageA(c)
    a("s_lshl_b32 s18, s3, 2")
    a("v_add_u32 v%d, s18, v%d" % (t1, t0))
    a("v_and_b32 v%d, 15, v0" % t2)
    a("v_xor_b32 v%d, v%d, v%d" % (t1, t1, t2))
    a("v_lshlrev_b32 v%d, 4, v%d" % (t1, t1))
    a("v_lshl_or_b32 v%d, v%d, 15, v%d" % (VB, t0, t1))
    a("v_lshl_or_b32 v%d, v%d, 10, v%d" % (VD, t0, t1))
    a("s_lshl_b32 s15, s3, 7")
    a("s_add_u32 s15, s15, s%d" % S_S2)
    a("s_lshl_b32 s15, s15, 10")
    a("s_lshl_b32 s16, s%d, 5" % S_J)
    a("s_lshl_b32 s18, s3, 2")
    a("s_add_u32 s16, s16, s18")
    a("s_lshl_b32 s16, s16, 10")
    a("s_or_b32 s17, s%d, s3" % S_J)
    for c in range(2, 5):
        stageA(c)
    A1, A2 = 20, 24
    WF = 28
    VI = 36
    FF = 40
    wphi_frags(a, vm, 0, WF, A1, A2, 60, S_HP)
    a("v_mov_b32 v%d, v60" % VI)
    a("s_lshr_b32 s18, s3, 1")
    a("s_lshl_b32 s18, s18, 5")
    a("v_add_u32 v%d, s18, v%d" % (t1, VI))
    a("v_lshrrev_b32 v%d, 5, v0" % t2)
    a("v_lshlrev_b32 v%d, 4, v%d" % (t2, t2))
    a("v_lshl_or_b32 v%d, v%d, 17, v%d" % (13, t1, t2))
    a("v_subrev_u32 v%d, 32, v%d" % (14, t1))
    a("v_max_i32 v%d, 0, v%d" % (14, 14))
    a("v_lshl_or_b32 v%d, v%d, 17, v%d" % (14, 14, t2))
    a("v_mov_b32 v%d, v%d" % (15, t1))
    for kk in range(4):
        a("buffer_load_dwordx4 v[%d:%d], v13, s[%d:%d], 0 offen offset:%d" % (FF + 4 * kk, FF + 4 * kk + 3, R_CR, R_CR + 3, 32 * kk))
    for kk in range(4):
        a("buffer_load_dwordx4 v[%d:%d], v14, s[%d:%d], 0 offen offset:%d" % (FF + 16 + 4 * kk, FF + 16 + 4 * kk + 3, R_CI, R_CI + 3, 32 * kk))
    vm.issue("f", 8)

    for c in range(8):
        a("s_waitcnt vmcnt(%d)" % vm.wait_n(("c", c)))
        a("s_barrier")
        if c >= 1:
            if c + 4 < 8:
                stageA(c + 4)
            else:
                stageB(c + 4)
    wphi_finish(a, WF, A1, A2, VI)
    a("v_cmp_lt_u32 vcc, 32, v15")
    for i in range(16):
        a("v_cndmask_b32 v%d, v%d, v%d, vcc" % (FF + i, FF + i, FF + 16 + i))
    BA, BB = 72, 80
    a("v_and_b32 v%d, 3, v%d" % (t1, VI))
    a("v_and_b32 v%d, 4, v%d" % (t2, VI))
    a("v_lshl_or_b32 v%d, v%d, 1, v%d" % (t1, t2, t1))
    a("v_and_b32 v%d, 8, v%d" % (t2, VI))
    a("v_lshrrev_b32 v%d, 1, v%d" % (t2, t2))
    a("v_or_b32 v%d, v%d, v%d" % (t1, t1, t2))
    a("v_and_b32 v%d, 16, v%d" % (t2, VI))
    a("v_or_b32 v%d, v%d, v%d" % (t1, t1, t2))
    a("v_lshrrev_b32 v%d, 5, v0" % t0)
    a("v_and_b32 v%d, 15, v%d" % (t2, t1))
    a("v_xor_b32 v%d, v%d, v%d" % (t2, t2, t0))
    a("v_lshlrev_b32 v%d, 4, v%d" % (t2, t2))
    a("v_lshl_or_b32 v%d, v%d, 8, v%d" % (t2, t1, t2))
    a("s_lshr_b32 s18, s3, 1")
    a("s_lshl_b32 s18, s18, 13")
    a("s_add_u32 s18, s18, 0x%x" % (3 * SLOT))
    a("v_add_u32 v%d, s18, v%d" % (BA, t2))
    a("s_and_b32 s18, s3, 1")
    a("s_lshl_b32 s18, s18, 13")
    a("s_add_u32 s18, s18, 0x%x" % (3 * SLOT + 16384))
    a("v_add_u32 v%d, s18, v%d" % (BB, t2))
    for k in range(1, 8):
        a("v_xor_b32 v%d, 0x%x, v%d" % (BA + k, 32 * k, BA))
        a("v_xor_b32 v%d, 0x%x, v%d" % (BB + k, 32 * k, BB))
    ACU = 96
    for r in range(16):
        a("v_mov_b32 v%d, 0" % (ACU + r))
    a("s_barrier")
    QF = 112
    DP = 120
    PH = 136
    T = 152
    a("s_lshl_b32 s18, s3, 12")
    a("s_add_u32 s18, s18, 0x%x" % (2 * SLOT))
    a("v_lshlrev_b32 v%d, 4, v0" % T)
    a("v_add_u32 v%d, s18, v%d" % (T + 1, T))
    a("ds_read_b128 v[%d:%d], v%d" % (QF, QF + 3, T + 1))
    a("ds_read_b128 v[%d:%d], v%d offset:1024" % (QF + 4, QF + 7, T + 1))
    a("s_waitcnt lgkmcnt(1)")
    a("v_mfma_f32_32x32x16_bf16 v[%d:%d], v[%d:%d], v[%d:%d], 0" % (DP, DP + 15, A1, A1 + 3, QF, QF + 3))
    a("s_waitcnt lgkmcnt(0)")
    a("v_mfma_f32_32x32x16_bf16 v[%d:%d], v[%d:%d], v[%d:%d], v[%d:%d]" % (DP, DP + 15, A2, A2 + 3, QF + 4, QF + 7, DP, DP + 15))
    softmax_units(a, DP, T + 2, PH)
    a("s_lshl_b32 s18, s%d, 2" % S_RT)
    a("s_add_u32 s18, s18, s3")
    a("s_lshl_b32 s18, s18, 16")
    a("s_lshl_b32 s19, s%d, 12" % S_HP)
    a("s_add_u32 s18, s18, s19")
    a("s_add_u32 s18, s18, 0x%x" % WS_PHI)
    for u in range(4):
        a("buffer_store_dwordx4 v[%d:%d], v%d, s[%d:%d], s18 offen offset:%d" % (PH + 4 * u, PH + 4 * u + 3, T, R_WS, R_WS + 3, 1024 * u))
    vm.issue("phi", 4)
    a("s_waitcnt vmcnt(%d)" % vm.wait_n(("c", 9)))
    a("s_barrier")
    BF = 160
    NB = 6
    DIST = 4

    def breads(gs):
        c = 8 + gs // 8
        k = gs % 8
        off = (SLOT if c in (9, 11) else 0)
        b = BF + (gs % NB) * 8
        a("ds_read_b128 v[%d:%d], v%d offset:%d" % (b, b + 3, BA + k, off))
        a("ds_read_b128 v[%d:%d], v%d offset:%d" % (b + 4, b + 7, BB + k, off))

    def bmf(gs):
        b = BF + (gs % NB) * 8
        a("v_mfma_f32_32x32x16_bf16 v[%d:%d], v[%d:%d], v[%d:%d], v[%d:%d]" % (ACU, ACU + 15, b, b + 3, b + 4, b + 7, ACU, ACU + 15))

    for half in range(2):
        g0 = 16 * half
        if half == 1:
            a("s_waitcnt vmcnt(%d)" % vm.wait_n(("c", 11)))
            a("s_barrier")
            for k in range(8):
                a("v_subrev_u32 v%d, 0x%x, v%d" % (BA + k, 3 * SLOT, BA + k))
                a("v_subrev_u32 v%d, 0x%x, v%d" % (BB + k, 3 * SLOT, BB + k))
        for g in range(g0, g0 + DIST):
            breads(g)
        for g in range(g0, g0 + 16):
            after = min(g0 + 15, g + DIST - 1) - g
            a("s_waitcnt lgkmcnt(%d)" % (2 * after))
            bmf(g)
            if g + DIST < g0 + 16:
                breads(g + DIST)
    UF = 112
    for d in range(8):
        a("v_cvt_pk_bf16_f32 v%d, v%d, v%d" % (UF + d, ACU + 2 * d, ACU + 2 * d + 1))
    a("s_lshl_b32 s18, s3, 11")
    a("s_add_u32 s18, s18, 0x%x" % (3 * SLOT))
    a("v_add_u32 v%d, s18, v%d" % (T + 1, T))
    a("ds_write_b128 v%d, v[%d:%d]" % (T + 1, UF, UF + 3))
    a("ds_write_b128 v%d, v[%d:%d] offset:1024" % (T + 1, UF + 4, UF + 7))
    a("s_xor_b32 s18, s3, 2")
    a("s_lshl_b32 s18, s18, 11")
    a("s_add_u32 s18, s18, 0x%x" % (3 * SLOT))
    a("v_add_u32 v%d, s18, v%d" % (T + 2, T))
    a("s_waitcnt lgkmcnt(0)")
    a("s_barrier")
    a("ds_read_b128 v[%d:%d], v%d" % (UF + 8, UF + 11, T + 2))
    a("ds_read_b128 v[%d:%d], v%d offset:1024" % (UF + 12, UF + 15, T + 2))
    DH = 120 + 16
    a("s_lshr_b32 s18, s3, 1")
    a("s_cmp_eq_u32 s18, 0")
    a("s_cbranch_scc1 K1_SA0")
    for i in range(8):
        a("v_swap_b32 v%d, v%d" % (FF + i, FF + 8 + i))
    a.label("K1_SA0")
    a("v_mfma_f32_32x32x16_bf16 v[%d:%d], v[%d:%d], v[%d:%d], 0" % (DH, DH + 15, UF, UF + 3, FF, FF + 3))
    a("v_mfma_f32_32x32x16_bf16 v[%d:%d], v[%d:%d], v[%d:%d], v[%d:%d]" % (DH, DH + 15, UF + 4, UF + 7, FF + 4, FF + 7, DH, DH + 15))
    a("s_waitcnt lgkmcnt(1)")
    a("v_mfma_f32_32x32x16_bf16 v[%d:%d], v[%d:%d], v[%d:%d], v[%d:%d]" % (DH, DH + 15, UF + 8, UF + 11, FF + 8, FF + 11, DH, DH + 15))
    a("s_waitcnt lgkmcnt(0)")
    a("v_mfma_f32_32x32x16_bf16 v[%d:%d], v[%d:%d], v[%d:%d], v[%d:%d]" % (DH, DH + 15, UF + 12, UF + 15, FF + 12, FF + 15, DH, DH + 15))
    HP = 112
    for d in range(8):
        a("v_cvt_pk_bf16_f32 v%d, v%d, v%d" % (HP + d, DH + 2 * d, DH + 2 * d + 1))
    a("v_lshrrev_b32 v%d, 5, v0" % t0)
    a("v_lshlrev_b32 v%d, 4, v%d" % (t0, t0))
    a("v_lshl_or_b32 v%d, v15, 10, v%d" % (t0, t0))
    a("s_lshl_b32 s18, s%d, 16" % S_S2)
    a("s_lshl_b32 s19, s%d, 7" % S_J)
    a("s_add_u32 s18, s18, s19")
    a("s_and_b32 s19, s3, 1")
    a("s_lshl_b32 s19, s19, 6")
    a("s_add_u32 s18, s18, s19")
    a("s_add_u32 s18, s18, 0x%x" % WS_H)
    a("buffer_store_dwordx4 v[%d:%d], v%d, s[%d:%d], s18 offen" % (HP, HP + 3, t0, R_WS, R_WS + 3))
    a("buffer_store_dwordx4 v[%d:%d], v%d, s[%d:%d], s18 offen offset:32" % (HP + 4, HP + 7, t0, R_WS, R_WS + 3))
    a.label("K1_END")
    a("s_endpgm")


def zero_kv(a, TT, VZ, S_HP):
    base = (TT + 3) & ~3
    for i in range(4):
        a("v_mov_b32 v%d, 0" % (base + i))
    a("v_lshlrev_b32 v%d, 4, v0" % (base + 4))
    a("s_lshl_b32 s18, s%d, 12" % S_HP)
    for i in range(4):
        a("buffer_store_dwordx4 v[%d:%d], v%d, s[%d:%d], s18 offen offset:%d sc1" % (base, base + 3, base + 4, R_WS, R_WS + 3, 1024 * i))
    a("s_lshl_b32 s18, s%d, 8" % S_HP)
    a("s_add_u32 s18, s18, 0x%x" % WS_Z)
    a("s_mov_b64 exec, 0xffff")
    a("buffer_store_dwordx4 v[%d:%d], v%d, s[%d:%d], s18 offen sc1" % (base, base + 3, base + 4, R_WS, R_WS + 3))
    a("s_mov_b64 exec, -1")


def kd(name, vgpr):
    return """.p2align 6
.amdhsa_kernel %s
  .amdhsa_next_free_vgpr %d
  .amdhsa_next_free_sgpr 102
  .amdhsa_accum_offset %d
  .amdhsa_group_segment_fixed_size 0
  .amdhsa_kernarg_size 96
  .amdhsa_user_sgpr_count 2
  .amdhsa_user_sgpr_kernarg_segment_ptr 1
  .amdhsa_system_sgpr_workgroup_id_x 1
.end_amdhsa_kernel
""" % (name, vgpr, vgpr)


def main():
    out = sys.argv[1] if len(sys.argv) > 1 else "cdna_kernels/%s.s" % NAME
    only1 = "--k1" in sys.argv
    hdr = open("cdna_kernels/%s.s.ref" % NAME).read().split("; Override launch geometry")[0]
    s = hdr
    s += "; @launch kernel=k1_kernel grid=(256,1,1) block=(512,1,1) lds=163840\n"
    if not only1:
        s += "; @launch kernel=k2_kernel grid=(256,1,1) block=(512,1,1) lds=163840\n"
    s += '.amdgcn_target "amdgcn-amd-amdhsa--gfx950"\n.text\n'
    a = Asm()
    gen_k1(a)
    s += a.text()
    if not only1:
        from gen2 import gen_k2
        b = Asm()
        gen_k2(b)
        s += b.text()
    s += '.section .rodata,"a"\n'
    s += kd("k1_kernel", 256)
    if not only1:
        s += kd("k2_kernel", 256)
    open(out, "w").write(s)
    print("wrote", out, len(s), "bytes; k1 instrs", a.ninstr)


if __name__ == "__main__":
    main()
```

```python
from dsl import Asm
from gen import *

L_WO = 0
L_KV = 65536
L_H = 102400
L_RED = 110592


def gen_k2(a):
    K = "k2_kernel"
    a.raw(".globl %s\n.p2align 8\n.type %s,@function\n%s:" % (K, K, K))
    a("s_cmp_ge_u32 s2, 256")
    a("s_cbranch_scc1 K2_END")
    load_ptrs(a)
    a("v_lshrrev_b32 v1, 6, v0")
    a("v_and_b32 v0, 63, v0")
    a("v_readfirstlane_b32 s3, v1")
    a("s_mov_b32 s26, s3")
    a("s_and_b32 s4, s2, 7")
    a("s_lshr_b32 s5, s2, 3")
    a("s_lshr_b32 s6, s5, 3")
    a("s_lshl_b32 s8, s4, 2")
    a("s_add_u32 s8, s8, s6")
    a("s_and_b32 s9, s5, 7")
    S_RT, S_CT, S_J, S_T1 = 8, 9, 4, 5
    a("s_waitcnt lgkmcnt(0)")
    srd(a, R_WS, P_WS, WS_SIZE)
    srd(a, R_WO, P_WO, 512 * 1024)
    srd(a, R_CR, P_CR, 2048 * 4096)
    srd(a, R_CI, P_CI, 2048 * 4096)
    srd(a, R_OUT, P_OUT, 2048 * 2048)
    a("s_cmp_ge_u32 s3, 4")
    a("s_cbranch_scc1 K2_HELPER")

    VKA, VWA, VT, VR = 1, 2, 3, 4
    st = Stamper(a, 104, 1)
    st()
    dbgst(a, 8, inv=True, k2=True, vr0=106)
    dbgst(a, 9, k2=True, vr0=106)
    OUT = 8
    D = 40
    KVF = 72
    WOF = 96
    PHI = 128
    a("s_and_b32 s10, s3, 1")
    a("s_lshr_b32 s11, s3, 1")
    a("s_lshl_b32 s18, s%d, 1" % S_RT)
    a("s_add_u32 s18, s18, s10")
    a("s_lshl_b32 s12, s18, 16")
    a("s_lshl_b32 s19, s11, 15")
    a("s_add_u32 s12, s12, s19")
    a("s_add_u32 s12, s12, 0x%x" % WS_PHI)
    a("v_lshlrev_b32 v%d, 4, v0" % VT)
    for t in range(16):
        for ks in range(2):
            o = t * 2048 + ks * 1024
            if o % 4096 == 0 and o:
                a("s_add_u32 s12, s12, 0x1000")
            r = PHI + t * 8 + ks * 4
            a("buffer_load_dwordx4 v[%d:%d], v%d, s[%d:%d], s12 offen offset:%d" % (r, r + 3, VT, R_WS, R_WS + 3, o % 4096))
    a("v_and_b32 v5, 31, v0")
    a("v_min_u32 v5, 16, v5")
    a("v_lshlrev_b32 v5, 4, v5")
    a("v_lshrrev_b32 v6, 5, v0")
    a("v_mul_u32_u24 v7, 272, v6")
    a("v_add_u32 v5, v5, v7")
    a("s_mul_i32 s18, s11, %d" % (16 * 1088))
    a("s_add_u32 s18, s18, 0x%x" % L_KV)
    a("v_add_u32 v%d, s18, v5" % VKA)
    a("v_lshrrev_b32 v5, 2, v0")
    a("v_and_b32 v5, 3, v5")
    a("v_lshl_or_b32 v5, v6, 3, v5")
    a("v_lshlrev_b32 v5, 6, v5")
    a("v_and_b32 v7, 16, v0")
    a("v_lshl_or_b32 v5, v7, 1, v5")
    a("v_and_b32 v7, 1, v0")
    a("v_lshl_or_b32 v5, v7, 4, v5")
    a("v_and_b32 v7, 2, v0")
    a("v_lshl_or_b32 v5, v7, 2, v5")
    a("s_lshl_b32 s18, s11, 14")
    a("v_add_u32 v%d, s18, v5" % VWA)
    for r in range(32):
        a("v_mov_b32 v%d, 0" % (OUT + r))
    a("s_mov_b32 s20, 0x358637bd")

    def kvreads(t):
        b = KVF + (t % 3) * 8
        for ks in range(2):
            a("ds_read_b128 v[%d:%d], v%d offset:%d" % (b + 4 * ks, b + 4 * ks + 3, VKA, t * 1088 + ks * 544))

    def woreads(t):
        b = WOF + (t % 2) * 16
        for ch in range(2):
            for hf in range(2):
                d = b + ch * 4 + hf * 2
                a("ds_read_b64_tr_b16 v[%d:%d], v%d offset:%d" % (d, d + 1, VWA, ch * 32768 + (16 * t + 4 * hf) * 64))

    def nd(t):
        b = KVF + (t % 3) * 8
        d = D + (t % 2) * 16
        p = PHI + t * 8
        a("v_mfma_f32_32x32x16_bf16 v[%d:%d], v[%d:%d], v[%d:%d], 0" % (d, d + 15, b, b + 3, p, p + 3))
        a("v_mfma_f32_32x32x16_bf16 v[%d:%d], v[%d:%d], v[%d:%d], v[%d:%d]" % (d, d + 15, b + 4, b + 7, p + 4, p + 7, d, d + 15))

    def valu(t):
        d = D + (t % 2) * 16
        a("v_add_f32 v%d, s20, v%d" % (VR, d + 8))
        a("v_rcp_f32 v%d, v%d" % (VR, VR))
        for r in range(8):
            a("v_mul_f32 v%d, v%d, v%d" % (d + r, d + r, VR))
        for k in range(4):
            a("v_cvt_pk_bf16_f32 v%d, v%d, v%d" % (d + k, d + 2 * k, d + 2 * k + 1))

    def outm(t):
        b = WOF + (t % 2) * 16
        d = D + (t % 2) * 16
        for ch in range(2):
            o = OUT + 16 * ch
            a("v_mfma_f32_32x32x16_bf16 v[%d:%d], v[%d:%d], v[%d:%d], v[%d:%d]" % (o, o + 15, b + 4 * ch, b + 4 * ch + 3, d, d + 3, o, o + 15))

    st()
    a("s_barrier")
    st()
    a("s_barrier")
    st()
    dbgst(a, 10, k2=True, vr0=106)
    q = []

    def rd(tag, fn, t, n):
        fn(t)
        q.extend([tag] * n)

    def waitl(tag):
        idx = max(i for i, x in enumerate(q) if x == tag)
        n = len(q) - 1 - idx
        a("s_waitcnt lgkmcnt(%d)" % min(n, 15))

    rd(("kv", 0), kvreads, 0, 2)
    rd(("kv", 1), kvreads, 1, 2)
    rd(("wo", 0), woreads, 0, 4)
    waitl(("kv", 0))
    a("s_waitcnt vmcnt(%d)" % (2 * 15))
    nd(0)
    for t in range(16):
        if t + 2 < 16:
            rd(("kv", t + 2), kvreads, t + 2, 2)
        if t + 1 < 16:
            if (t + 1) % 4 == 0:
                a("s_barrier")
                st()
            rd(("wo", t + 1), woreads, t + 1, 4)
            waitl(("kv", t + 1))
            a("s_waitcnt vmcnt(%d)" % (2 * (14 - t)))
            nd(t + 1)
        valu(t)
        waitl(("wo", t))
        outm(t)
    st()
    a("s_lshl_b32 s18, s3, 12")
    a("s_add_u32 s18, s18, 0x%x" % L_RED)
    a("v_add_u32 v5, s18, v%d" % VT)
    a("s_xor_b32 s18, s3, 2")
    a("s_lshl_b32 s18, s18, 12")
    a("s_add_u32 s18, s18, 0x%x" % L_RED)
    a("v_add_u32 v6, s18, v%d" % VT)
    a("s_cmp_eq_u32 s11, 0")
    a("s_cbranch_scc1 K2_R0")
    for r in range(16):
        a("v_swap_b32 v%d, v%d" % (OUT + r, OUT + 16 + r))
    a.label("K2_R0")
    for qd in range(4):
        a("ds_write_b128 v5, v[%d:%d] offset:%d" % (OUT + 16 + 4 * qd, OUT + 16 + 4 * qd + 3, 1024 * qd))
    a("s_waitcnt lgkmcnt(0)")
    a("s_barrier")
    for qd in range(4):
        a("ds_read_b128 v[%d:%d], v6 offset:%d" % (D + 4 * qd, D + 4 * qd + 3, 1024 * qd))
    a("v_and_b32 v5, 31, v0")
    a("v_lshrrev_b32 v7, 5, v0")
    a("v_lshlrev_b32 v7, 4, v7")
    a("v_lshl_or_b32 v5, v5, 11, v7")
    a("s_lshl_b32 s18, s%d, 6" % S_RT)
    a("s_lshl_b32 s19, s10, 5")
    a("s_add_u32 s18, s18, s19")
    a("s_lshl_b32 s18, s18, 11")
    a("s_lshl_b32 s19, s%d, 7" % S_CT)
    a("s_add_u32 s18, s18, s19")
    a("s_lshl_b32 s19, s11, 6")
    a("s_add_u32 s18, s18, s19")
    for qd in range(4):
        a("s_waitcnt lgkmcnt(%d)" % (3 - qd))
        for i in range(4):
            r = 4 * qd + i
            a("v_add_f32 v%d, v%d, v%d" % (OUT + r, OUT + r, D + r))
    for k in range(8):
        a("v_cvt_pk_bf16_f32 v%d, v%d, v%d" % (D + 16 + k, OUT + 2 * k, OUT + 2 * k + 1))
    a("buffer_store_dwordx4 v[%d:%d], v5, s[%d:%d], s18 offen" % (D + 16, D + 19, R_OUT, R_OUT + 3))
    a("buffer_store_dwordx4 v[%d:%d], v5, s[%d:%d], s18 offen offset:32" % (D + 20, D + 23, R_OUT, R_OUT + 3))
    import gen
    dbgst(a, 11, k2=True, vr0=106)
    if gen.STAMP:
        st()
        a("s_waitcnt vmcnt(0)")
        st()
        st.flush(26, 5)
    a("s_endpgm")

    a.label("K2_HELPER")
    vm = VMQ()
    st = Stamper(a, 250, 1)
    st()
    a("s_sub_u32 s3, s3, 4")
    a("s_and_b32 s10, s3, 1")
    a("s_lshr_b32 s11, s3, 1")
    a("v_lshrrev_b32 v1, 2, v0")
    a("v_and_b32 v2, 3, v0")
    a("v_lshlrev_b32 v2, 4, v2")
    a("v_lshl_or_b32 v3, v1, 16, v2")
    a("s_lshl_b32 s18, s11, 5")
    a("s_add_u32 s18, s18, s%d" % S_T1)
    a("s_lshl_b32 s18, s18, 10")
    a("s_lshl_b32 s19, s%d, 7" % S_J)
    a("s_add_u32 s18, s18, s19")
    a("s_lshl_b32 s19, s10, 6")
    a("s_add_u32 s18, s18, s19")
    a("s_add_u32 s18, s18, 0x%x" % WS_H)
    a("s_lshl_b32 s19, s10, 12")
    a("s_lshl_b32 s20, s11, 11")
    a("s_add_u32 s19, s19, s20")
    a("s_add_u32 m0, s19, 0x%x" % L_H)
    a("s_nop 0")
    a("buffer_load_dwordx4 v3, s[%d:%d], s18 offen lds" % (R_WS, R_WS + 3))
    a("s_add_u32 m0, s19, 0x%x" % (L_H + 1024))
    a("s_add_u32 s18, s18, 0x100000")
    a("buffer_load_dwordx4 v3, s[%d:%d], s18 offen lds" % (R_WS, R_WS + 3))
    vm.issue("h", 2)
    a("s_cmp_eq_u32 s%d, 0" % S_T1)
    a("s_cselect_b32 s12, 1, 0")
    a("s_and_b32 s13, s12, s10")
    a("s_lshl_b32 s14, s13, 5")
    a("s_add_u32 s14, s14, s%d" % S_T1)
    CR0, CI0 = 16, 24
    a("v_and_b32 v4, 31, v0")
    a("v_lshlrev_b32 v5, 6, v4")
    a("v_add_u32 v5, s14, v5")
    a("v_lshrrev_b32 v6, 5, v0")
    a("v_lshlrev_b32 v7, 4, v6")
    a("v_lshl_or_b32 v7, v5, 12, v7")
    for ks in range(2):
        a("buffer_load_dwordx4 v[%d:%d], v7, s[%d:%d], 0 offen offset:%d" % (CR0 + 4 * ks, CR0 + 4 * ks + 3, R_CR, R_CR + 3, 32 * ks))
        a("buffer_load_dwordx4 v[%d:%d], v7, s[%d:%d], 0 offen offset:%d" % (CI0 + 4 * ks, CI0 + 4 * ks + 3, R_CI, R_CI + 3, 32 * ks))
    vm.issue("coef", 4)
    KVR = 128
    a("s_lshl_b32 s18, s3, 10")
    a("v_lshlrev_b32 v8, 4, v0")
    a("v_add_u32 v8, s18, v8")
    a("s_mov_b32 s18, 0")
    for it in range(16):
        a("buffer_load_dwordx4 v[%d:%d], v8, s[%d:%d], s18 offen" % (KVR + 4 * it, KVR + 4 * it + 3, R_WS, R_WS + 3))
        vm.issue(("kv", it))
        a("s_add_u32 s18, s18, 0x1000")
    a("buffer_load_dwordx4 v[%d:%d], v8, s[%d:%d], s18 offen" % (KVR + 64, KVR + 67, R_WS, R_WS + 3))
    vm.issue(("kv", 16))
    a("v_lshl_or_b32 v9, v1, 10, v2")
    a("s_lshl_b32 s15, s11, 18")
    a("s_lshl_b32 s18, s%d, 7" % S_CT)
    a("s_add_u32 s15, s15, s18")
    a("s_lshl_b32 s18, s10, 6")
    a("s_add_u32 s15, s15, s18")
    a("s_lshl_b32 s16, s10, 15")
    a("s_lshl_b32 s18, s11, 14")
    a("s_add_u32 s16, s16, s18")
    for t in range(16):
        a("s_add_u32 m0, s16, 0x%x" % (L_WO + t * 1024))
        a("s_add_u32 s18, s15, 0x%x" % (t * 16384))
        a("buffer_load_dwordx4 v9, s[%d:%d], s18 offen lds" % (R_WO, R_WO + 3))
        vm.issue(("wo", t))
    a("v_and_b32 v10, 3, v1")
    a("v_lshl_or_b32 v10, v6, 3, v10")
    a("v_lshlrev_b32 v10, 6, v10")
    a("v_and_b32 v11, 16, v0")
    a("v_lshl_or_b32 v10, v11, 1, v10")
    a("v_and_b32 v11, 1, v0")
    a("v_lshl_or_b32 v10, v11, 4, v10")
    a("v_and_b32 v11, 2, v0")
    a("v_lshl_or_b32 v10, v11, 2, v10")
    a("s_lshl_b32 s18, s13, 11")
    a("s_add_u32 s18, s18, 0x%x" % L_H)
    a("v_add_u32 v11, s18, v10")
    a("v_add_u32 v12, 0x%x, v10" % (L_H + 2048))
    a("s_xor_b32 s18, s10, s11")
    a("s_cmp_lg_u32 s12, 0")
    a("s_cselect_b32 s18, s11, s18")
    a("s_cmp_eq_u32 s18, 0")
    a("s_cselect_b32 s17, 0x80008000, 0")
    a("v_cmp_eq_u32 vcc, 0, v4")
    a("s_cmp_eq_u32 s%d, 0" % S_J)
    a("s_cselect_b64 s[22:23], vcc, 0")
    st()
    a("s_waitcnt vmcnt(%d)" % vm.wait_n("h"))
    st()
    a("s_barrier")
    st()
    HA, HB = 32, 40
    HA2, HB2 = 48, 56
    ACC = 64
    SC = 80
    NC = 88
    SR = 96

    def hreads(base, addr, ab):
        for ks in range(2):
            for hf in range(2):
                d = base + 4 * ks + 2 * hf
                a("ds_read_b64_tr_b16 v[%d:%d], v%d offset:%d" % (d, d + 1, addr, ab * 4096 + (16 * ks + 4 * hf) * 64))
    hreads(HA, 11, 0)
    hreads(HB, 11, 1)
    hreads(HA2, 12, 0)
    hreads(HB2, 12, 1)
    a("s_waitcnt vmcnt(%d)" % vm.wait_n("coef"))
    a("s_mov_b32 s19, 0x80008000")
    for i in range(8):
        a("v_xor_b32 v%d, s17, v%d" % (SC + i, CI0 + i))
        a("v_xor_b32 v%d, s19, v%d" % (NC + i, CI0 + i))
        a("v_xor_b32 v%d, s17, v%d" % (SR + i, CR0 + i))
    a("s_waitcnt lgkmcnt(0)")
    a("s_cmp_eq_u32 s11, 0")
    a("s_cbranch_scc1 K2_FIXD")
    for i in range(8):
        a("v_cndmask_b32 v%d, v%d, v%d, s[22:23]" % (HA + i, HA + i, HB + i))
        a("v_cndmask_b32 v%d, v%d, v%d, s[22:23]" % (HA2 + i, HA2 + i, HB2 + i))
    a.label("K2_FIXD")
    for i in range(8):
        a("v_cndmask_b32 v%d, v%d, 0, s[22:23]" % (HB + i, HB + i))
        a("v_cndmask_b32 v%d, v%d, 0, s[22:23]" % (HB2 + i, HB2 + i))

    def mf(A, B, first=False):
        c = "0" if first else "v[%d:%d]" % (ACC, ACC + 15)
        a("v_mfma_f32_32x32x16_bf16 v[%d:%d], v[%d:%d], v[%d:%d], %s" % (ACC, ACC + 15, A, A + 3, B, B + 3, c))
    mf(HA, CR0, True)
    mf(HA + 4, CR0 + 4)
    mf(HB, SC)
    mf(HB + 4, SC + 4)
    a("s_cmp_lg_u32 s12, 0")
    a("s_cbranch_scc1 K2_B0DONE")
    mf(HA2, NC)
    mf(HA2 + 4, NC + 4)
    mf(HB2, SR)
    mf(HB2 + 4, SR + 4)
    a.label("K2_B0DONE")
    a("s_andn2_b32 s18, s10, s12")
    a("v_sub_u32 v13, 0x800, v5")
    a("s_cmp_lg_u32 s18, 0")
    a("s_cselect_b64 vcc, -1, 0")
    a("v_cndmask_b32 v13, v5, v13, vcc")
    a("v_lshlrev_b32 v13, 11, v13")
    a("s_cmp_lg_u32 s11, 0")
    a("s_cbranch_scc1 K2_BMIR")
    PK = 104
    for k in range(8):
        a("v_cvt_pk_bf16_f32 v%d, v%d, v%d" % (PK + k, ACC + 2 * k, ACC + 2 * k + 1))
    a("v_lshl_add_u32 v13, v6, 4, v13")
    a("s_lshl_b32 s18, s%d, 6" % S_J)
    a("s_add_u32 s18, s18, 1024")
    a("buffer_store_dwordx4 v[%d:%d], v13, s[%d:%d], s18 offen" % (PK, PK + 3, R_OUT, R_OUT + 3))
    a("buffer_store_dwordx4 v[%d:%d], v13, s[%d:%d], s18 offen offset:32" % (PK + 4, PK + 7, R_OUT, R_OUT + 3))
    a("s_branch K2_BDONE")
    a.label("K2_BMIR")
    for g in range(2):
        x = ACC + 8 * g
        p = PK + 4 * g
        a("v_cvt_pk_bf16_f32 v%d, v%d, v%d" % (p, x + 6, x + 5))
        a("v_cvt_pk_bf16_f32 v%d, v%d, v%d" % (p + 1, x + 4, x + 3))
        a("v_cvt_pk_bf16_f32 v%d, v%d, v%d" % (p + 2, x + 2, x + 1))
        a("v_cvt_pk_bf16_f32 v%d, v%d, v%d" % (p + 3, x + 7, x + 0))
    a("v_xor_b32 v14, 1, v6")
    a("v_lshl_add_u32 v14, v14, 4, v13")
    a("s_lshl_b32 s18, s%d, 6" % S_J)
    a("s_sub_u32 s18, %d, s18" % (2048 - 14 - 32 - 16))
    for g in range(2):
        p = PK + 4 * g
        off = 32 * (1 - g)
        a("buffer_store_short v%d, v14, s[%d:%d], s18 offen offset:%d" % (p + 3, R_OUT, R_OUT + 3, off))
        a("buffer_store_dwordx3 v[%d:%d], v14, s[%d:%d], s18 offen offset:%d" % (p, p + 2, R_OUT, R_OUT + 3, off + 2))
    a("buffer_store_short_d16_hi v%d, v14, s[%d:%d], s18 offen offset:14" % (PK + 7, R_OUT, R_OUT + 3))
    a("v_add_u32 v15, s18, v14")
    a("v_add_u32 v15, 46, v15")
    a("v_add_u32 v14, 0x600, v13")
    a("v_cmp_gt_u32 vcc, 32, v0")
    a("s_cmp_eq_u32 s%d, 0" % S_J)
    a("s_cselect_b64 vcc, vcc, 0")
    a("v_cndmask_b32 v15, v15, v14, vcc")
    a("buffer_store_short_d16_hi v%d, v15, s[%d:%d], 0 offen" % (PK + 3, R_OUT, R_OUT + 3))
    a.label("K2_BDONE")
    vm.issue("bst", 2)
    st()
    a("v_lshrrev_b32 v10, 4, v0")
    a("v_and_b32 v10, 3, v10")
    a("v_lshrrev_b32 v11, 3, v0")
    a("v_and_b32 v11, 1, v11")
    a("v_lshl_or_b32 v10, v11, 3, v10")
    a("s_lshl_b32 s18, s10, 2")
    a("v_add_u32 v10, s18, v10")
    a("v_lshlrev_b32 v10, 4, v10")
    a("v_lshrrev_b32 v11, 2, v0")
    a("v_and_b32 v11, 1, v11")
    a("v_mul_u32_u24 v11, 544, v11")
    a("v_add_u32 v10, v10, v11")
    a("v_lshrrev_b32 v11, 1, v0")
    a("v_and_b32 v11, 1, v11")
    a("v_mul_u32_u24 v11, 272, v11")
    a("v_add_u32 v10, v10, v11")
    a("v_and_b32 v11, 1, v0")
    a("v_lshl_add_u32 v10, v11, 3, v10")
    a("s_mul_i32 s18, s11, 1088")
    a("s_add_u32 s18, s18, 0x%x" % L_KV)
    a("v_add_u32 v10, s18, v10")
    a("s_lshl_b32 s18, s3, 3")
    a("v_lshrrev_b32 v11, 3, v0")
    a("v_add_u32 v11, s18, v11")
    a("v_mul_u32_u24 v11, 1088, v11")
    a("v_lshrrev_b32 v12, 2, v0")
    a("v_and_b32 v12, 1, v12")
    a("v_mul_u32_u24 v12, 544, v12")
    a("v_add_u32 v11, v11, v12")
    a("v_lshrrev_b32 v12, 1, v0")
    a("v_and_b32 v12, 1, v12")
    a("v_mul_u32_u24 v12, 272, v12")
    a("v_add_u32 v11, v11, v12")
    a("v_and_b32 v12, 1, v0")
    a("v_lshl_add_u32 v11, v12, 3, v11")
    a("v_add_u32 v11, 0x%x, v11" % (L_KV + 256))
    for it in range(17):
        r = KVR + 4 * it
        a("s_waitcnt vmcnt(%d)" % vm.wait_n(("kv", it)))
        a("v_cvt_pk_bf16_f32 v%d, v%d, v%d" % (r, r, r + 1))
        a("v_cvt_pk_bf16_f32 v%d, v%d, v%d" % (r + 1, r + 2, r + 3))
        if it < 16:
            a("ds_write_b64 v10, v[%d:%d] offset:%d" % (r, r + 1, it * 2 * 1088))
        else:
            a("ds_write_b64 v11, v[%d:%d]" % (r, r + 1))
    a("s_waitcnt lgkmcnt(0)")
    st()
    for ph in range(4):
        a("s_waitcnt vmcnt(%d)" % vm.wait_n(("wo", 4 * ph + 3)))
        st()
        a("s_barrier")
    dbgst(a, 12, k2=True)
    if gen.STAMP:
        a("s_waitcnt vmcnt(0)")
        st()
        st.flush(26, 5)
    a.label("K2_END")
    a("s_endpgm")
```

```python
import sys
from dsl import Asm, vr, sr

NAME = "concat_heads__linear_kernel_hedgehog__spectral_fnet__prompt"

WS_KV = 0
WS_Z = 65536
WS_PHI = 1 << 20
WS_H = 8 << 20
WS_SIZE = 64 << 20

LOG2E = 0x3FB8AA3B
NLOG2E = 0xBFB8AA3B

SLOT = 32768


class VMQ:
    def __init__(self):
        self.q = []

    def issue(self, tag, n=1):
        self.q += [tag] * n

    def wait_n(self, tag):
        idx = max(i for i, t in enumerate(self.q) if t == tag)
        return len(self.q) - 1 - idx


def srd(a, d, lo, nbytes):
    a("s_mov_b32 s%d, s%d" % (d, lo))
    a("s_mov_b32 s%d, s%d" % (d + 1, lo + 1))
    a("s_mov_b32 s%d, 0x%x" % (d + 2, nbytes))
    a("s_mov_b32 s%d, 0x00020000" % (d + 3))


P_X, P_W, P_WP, P_WO, P_XB, P_CR, P_CI, P_DR = 32, 34, 36, 38, 40, 42, 44, 46
P_DI, P_OUT, P_DBG, P_WS = 48, 50, 52, 54
R_X, R_W, R_XB, R_DR, R_DI, R_WS, R_CR, R_CI, R_WP, R_WO, R_OUT = 56, 60, 64, 68, 72, 76, 80, 84, 88, 92, 96


def load_ptrs(a):
    a("s_load_dwordx16 s[32:47], s[0:1], 0")
    a("s_load_dwordx8 s[48:55], s[0:1], 64")


def softmax_units(a, X, T, P):
    for r in range(0, 16, 2):
        t = T + r // 2
        a("v_cvt_pk_bf16_f32 v%d, v%d, v%d" % (t, X + r, X + r + 1))
    for r in range(0, 16, 2):
        t = T + r // 2
        a("v_lshlrev_b32 v%d, 16, v%d" % (X + r, t))
        a("v_and_b32 v%d, 0xffff0000, v%d" % (X + r + 1, t))
    MX = [T + 0, T + 1]
    MN = [T + 2, T + 3]
    TX = [T + 4, T + 5]
    TN = [T + 6, T + 7]
    for hd in range(2):
        x = X + 8 * hd
        a("v_max3_f32 v%d, v%d, v%d, v%d" % (MX[hd], x, x + 1, x + 2))
        a("v_min3_f32 v%d, v%d, v%d, v%d" % (MN[hd], x, x + 1, x + 2))
    for k in (3, 5):
        for hd in range(2):
            x = X + 8 * hd
            a("v_max3_f32 v%d, v%d, v%d, v%d" % (MX[hd], MX[hd], x + k, x + k + 1))
            a("v_min3_f32 v%d, v%d, v%d, v%d" % (MN[hd], MN[hd], x + k, x + k + 1))
    for hd in range(2):
        x = X + 8 * hd
        a("v_max_f32 v%d, v%d, v%d" % (MX[hd], MX[hd], x + 7))
        a("v_min_f32 v%d, v%d, v%d" % (MN[hd], MN[hd], x + 7))
    for hd in range(2):
        a("v_mov_b32 v%d, v%d" % (TX[hd], MX[hd]))
        a("v_mov_b32 v%d, v%d" % (TN[hd], MN[hd]))
    for hd in range(2):
        a("v_permlane32_swap_b32 v%d, v%d" % (MX[hd], TX[hd]))
        a("v_permlane32_swap_b32 v%d, v%d" % (MN[hd], TN[hd]))
    for hd in range(2):
        a("v_max_f32 v%d, v%d, v%d" % (MX[hd], MX[hd], TX[hd]))
        a("v_min_f32 v%d, v%d, v%d" % (MN[hd], MN[hd], TN[hd]))
    for hd in range(2):
        a("v_mul_f32 v%d, s29, v%d" % (MX[hd], MX[hd]))
        a("v_mul_f32 v%d, s28, v%d" % (MN[hd], MN[hd]))
    EM = T + 8
    for r in range(16):
        hd = r >> 3
        a("v_fma_f32 v%d, v%d, s29, v%d" % (EM + r, X + r, MN[hd]))
        a("v_fma_f32 v%d, v%d, s28, v%d" % (X + r, X + r, MX[hd]))
    for r in range(16):
        a("v_exp_f32 v%d, v%d" % (EM + r, EM + r))
        a("v_exp_f32 v%d, v%d" % (X + r, X + r))
    SP = [T + 0, T + 1]
    SM = [T + 2, T + 3]
    for hd in range(2):
        a("v_add_f32 v%d, v%d, v%d" % (SP[hd], X + 8 * hd, X + 8 * hd + 1))
        a("v_add_f32 v%d, v%d, v%d" % (SM[hd], EM + 8 * hd, EM + 8 * hd + 1))
        a("v_add_f32 v%d, v%d, v%d" % (TX[hd], X + 8 * hd + 2, X + 8 * hd + 3))
        a("v_add_f32 v%d, v%d, v%d" % (TN[hd], EM + 8 * hd + 2, EM + 8 * hd + 3))
    for k in (4, 6):
        for hd in range(2):
            a("v_add_f32 v%d, v%d, v%d" % (SP[hd], SP[hd], X + 8 * hd + k))
            a("v_add_f32 v%d, v%d, v%d" % (SM[hd], SM[hd], EM + 8 * hd + k))
            a("v_add_f32 v%d, v%d, v%d" % (TX[hd], TX[hd], X + 8 * hd + k + 1))
            a("v_add_f32 v%d, v%d, v%d" % (TN[hd], TN[hd], EM + 8 * hd + k + 1))
    for hd in range(2):
        a("v_add_f32 v%d, v%d, v%d" % (SP[hd], SP[hd], TX[hd]))
        a("v_add_f32 v%d, v%d, v%d" % (SM[hd], SM[hd], TN[hd]))
    for hd in range(2):
        a("v_mov_b32 v%d, v%d" % (TX[hd], SP[hd]))
        a("v_mov_b32 v%d, v%d" % (TN[hd], SM[hd]))
    for hd in range(2):
        a("v_permlane32_swap_b32 v%d, v%d" % (SP[hd], TX[hd]))
        a("v_permlane32_swap_b32 v%d, v%d" % (SM[hd], TN[hd]))
    for hd in range(2):
        a("v_add_f32 v%d, v%d, v%d" % (SP[hd], SP[hd], TX[hd]))
        a("v_add_f32 v%d, v%d, v%d" % (SM[hd], SM[hd], TN[hd]))
    for hd in range(2):
        a("v_rcp_f32 v%d, v%d" % (SP[hd], SP[hd]))
        a("v_rcp_f32 v%d, v%d" % (SM[hd], SM[hd]))
    for r in range(16):
        hd = r >> 3
        a("v_mul_f32 v%d, v%d, v%d" % (X + r, X + r, SP[hd]))
        a("v_mul_f32 v%d, v%d, v%d" % (EM + r, EM + r, SM[hd]))
    for hd in range(2):
        for d in range(4):
            a("v_cvt_pk_bf16_f32 v%d, v%d, v%d" % (P + 8 * hd + d, X + 8 * hd + 2 * d, X + 8 * hd + 2 * d + 1))
            a("v_cvt_pk_bf16_f32 v%d, v%d, v%d" % (P + 8 * hd + 4 + d, EM + 8 * hd + 2 * d, EM + 8 * hd + 2 * d + 1))


def wphi_frags(a, vm, LANE, WF, A1, A2, T, s_hp):
    a("v_and_b32 v%d, 31, v%d" % (T, LANE))
    a("v_lshrrev_b32 v%d, 5, v%d" % (T + 1, LANE))
    a("v_and_b32 v%d, 3, v%d" % (T + 2, T))
    a("v_and_b32 v%d, 4, v%d" % (T + 3, T))
    a("v_lshl_or_b32 v%d, v%d, 1, v%d" % (T + 2, T + 3, T + 2))
    a("v_and_b32 v%d, 8, v%d" % (T + 3, T))
    a("v_lshrrev_b32 v%d, 1, v%d" % (T + 3, T + 3))
    a("v_or_b32 v%d, v%d, v%d" % (T + 2, T + 2, T + 3))
    a("v_lshrrev_b32 v%d, 4, v%d" % (T + 3, T))
    a("v_lshl_or_b32 v%d, v%d, 8, v%d" % (T + 2, T + 3, T + 2))
    a("v_lshl_or_b32 v%d, v%d, 7, v%d" % (T + 2, T + 1, T + 2))
    a("v_lshlrev_b32 v%d, 1, v%d" % (T + 2, T + 2))
    a("s_lshl_b32 s27, s%d, 10" % s_hp)
    for j in range(8):
        a("buffer_load_ushort v%d, v%d, s[%d:%d], s27 offen offset:%d" % (WF + j, T + 2, R_WP, R_WP + 3, j * 32))
    vm.issue("wphi", 8)
    return T


def wphi_finish(a, WF, A1, A2, Ti):
    for d in range(4):
        a("v_lshl_or_b32 v%d, v%d, 16, v%d" % (WF + d * 2, WF + 2 * d + 1, WF + 2 * d))
    a("v_cmp_gt_u32 vcc, 16, v%d" % Ti)
    for d in range(4):
        a("v_cndmask_b32 v%d, 0, v%d, vcc" % (A1 + d, WF + 2 * d))
        a("v_cndmask_b32 v%d, v%d, 0, vcc" % (A2 + d, WF + 2 * d))


STAMP = False
WS_ST = 32 << 20


class Stamper:
    def __init__(self, a, vreg, kid):
        self.a, self.v, self.k, self.n = a, vreg, kid, 0

    def __call__(self):
        if not STAMP:
            return
        a = self.a
        a("s_memrealtime s[100:101]")
        a("s_waitcnt lgkmcnt(0)")
        a("v_writelane_b32 v%d, s100, %d" % (self.v, self.n))
        if self.n == 0:
            a("s_memtime s[100:101]")
            a("s_waitcnt lgkmcnt(0)")
            a("v_writelane_b32 v%d, s100, 62" % self.v)
        self.n += 1

    def flush(self, wave_sgpr_expr_reg, t0):
        if not STAMP:
            return
        a = self.a
        a("s_memtime s[100:101]")
        a("s_waitcnt lgkmcnt(0)")
        a("v_writelane_b32 v%d, s100, 63" % self.v)
        a("s_lshl_b32 s100, s2, 3")
        a("s_add_u32 s100, s100, s%d" % wave_sgpr_expr_reg)
        a("s_lshl_b32 s100, s100, 8")
        a("s_add_u32 s100, s100, 0x%x" % (WS_ST + self.k * 256 * 8 * 256))
        a("v_mbcnt_lo_u32_b32 v%d, -1, 0" % t0)
        a("v_mbcnt_hi_u32_b32 v%d, -1, v%d" % (t0, t0))
        a("v_lshlrev_b32 v%d, 2, v%d" % (t0, t0))
        a("buffer_store_dword v%d, v%d, s[%d:%d], s100 offen" % (self.v, t0, R_WS, R_WS + 3))


DBGST = False


def dbgst(a, word, inv=False, k2=False, wave_sgpr=26, vr0=252):
    if not DBGST:
        return
    global _dbg_uid
    _dbg_uid += 1
    L = "DBGST_w%d" % word
    a("s_and_b32 s100, s%d, 3" % wave_sgpr)
    a("s_cmp_lg_u32 s100, 0")
    a("s_cbranch_scc1 %s" % L)
    a("s_memrealtime s[100:101]")
    a("s_waitcnt lgkmcnt(0)")
    if inv:
        a("s_not_b32 s100, s100")
    a("v_mov_b32 v%d, s100" % vr0)
    a("v_mov_b32 v%d, 0" % (vr0 + 1))
    a("s_mov_b64 exec, 1")
    a("global_atomic_umax v%d, v%d, s[%d:%d] offset:%d" % (vr0 + 1, vr0, P_DBG, P_DBG + 1, word * 4 - (512 if k2 else 0)))
    a("s_mov_b64 exec, -1")
    a.label(L)


_dbg_uid = 0


def gen_k1(a):
    K = "k1_kernel"
    a.raw(".globl %s\n.p2align 8\n.type %s,@function\n%s:" % (K, K, K))
    a("s_cmp_ge_u32 s2, 256")
    a("s_cbranch_scc1 K1_END")
    load_ptrs(a)
    a("v_lshrrev_b32 v1, 6, v0")
    a("v_and_b32 v0, 63, v0")
    a("v_readfirstlane_b32 s3, v1")
    a("s_mov_b32 s26, s3")
    a("s_and_b32 s4, s2, 7")
    a("s_lshr_b32 s5, s2, 3")
    a("s_lshr_b32 s6, s5, 3")
    a("s_and_b32 s7, s5, 7")
    a("s_lshr_b32 s8, s4, 1")
    a("s_lshl_b32 s8, s8, 2")
    a("s_add_u32 s8, s8, s6")
    a("s_and_b32 s9, s4, 1")
    a("s_lshl_b32 s9, s9, 3")
    a("s_add_u32 s9, s9, s7")
    a("s_lshl_b32 s10, s4, 2")
    a("s_add_u32 s10, s10, s6")
    a("s_mov_b32 s28, 0x%x" % LOG2E)
    a("s_mov_b32 s29, 0x%x" % NLOG2E)
    a("s_waitcnt lgkmcnt(0)")
    srd(a, R_X, P_X, 2048 * 1024)
    srd(a, R_W, P_W, 512 * 3072)
    srd(a, R_XB, P_XB, 2048 * 1024)
    srd(a, R_DR, P_DR, 512 * 1024)
    srd(a, R_DI, P_DI, 512 * 1024)
    srd(a, R_WS, P_WS, WS_SIZE)
    srd(a, R_CR, P_CR, 2048 * 4096)
    srd(a, R_CI, P_CI, 2048 * 4096)
    srd(a, R_WP, P_WP, 32 * 512)
    a("s_cmp_ge_u32 s3, 4")
    a("s_cbranch_scc1 K1_HELPER")
    S_RT, S_HP, S_S2, S_J = 8, 9, 10, 7

    vm = VMQ()
    st = Stamper(a, 250, 0)
    st()
    dbgst(a, 0, inv=True)
    dbgst(a, 5)
    LANE = 0
    XA = 2
    WQ = 14
    WV = 17
    A1, A2 = 20, 24
    I0, I1 = 28, 32
    VI = 36
    VF = 37
    VZ = 38
    ACQ, ACK, ACV = 40, 56, 72
    FR = 88
    T = 152
    a("s_getpc_b64 s[12:13]")
    a("v_lshlrev_b32 v%d, 6, v0" % T)
    NPF = 6
    for i in range(NPF):
        a("global_load_dword v%d, v%d, s[12:13] offset:0" % (T + 1 + i, T))
        if i != NPF - 1:
            a("v_add_u32 v%d, 0x1000, v%d" % (T, T))
    vm.issue("pf", NPF)
    a("s_or_b32 s14, s%d, s3" % S_RT)
    a("v_mov_b32 v%d, 0" % VZ)
    a("s_lshl_b32 s15, s%d, 3" % S_HP)
    if DBGST:
        a("s_add_u32 s15, s15, 128")
    a("s_add_u32 s16, s%d, s15" % P_DBG)
    a("s_addc_u32 s17, s%d, 0" % (P_DBG + 1))
    a("s_cmp_lg_u32 s14, 0")
    a("s_cbranch_scc1 K1_NOCLAIM")
    a("v_mov_b32 v%d, 1" % (T + 10))
    a("s_mov_b64 exec, 1")
    a("global_atomic_add v%d, v%d, v%d, s[16:17] sc0" % (T + 11, VZ, T + 10))
    a("s_mov_b64 exec, -1")
    a.label("K1_NOCLAIM")
    WF = T + 12
    wphi_frags(a, vm, LANE, WF, A1, A2, T + 20, S_HP)
    a("v_mov_b32 v%d, v%d" % (VI, T + 20))
    t0, t1, t2 = T + 24, T + 25, T + 26
    a("v_lshrrev_b32 v%d, 5, v0" % t0)
    a("s_lshl_b32 s18, s3, 5")
    a("v_add_u32 v%d, s18, v%d" % (t1, VI))
    a("v_lshrrev_b32 v%d, 1, v%d" % (t2, t1))
    a("v_and_b32 v%d, 7, v%d" % (t2, t2))
    a("v_xor_b32 v%d, v%d, v%d" % (t2, t2, t0))
    a("v_lshlrev_b32 v%d, 4, v%d" % (t2, t2))
    a("v_lshl_or_b32 v%d, v%d, 7, v%d" % (XA, t1, t2))
    for k in range(1, 4):
        a("v_xor_b32 v%d, 0x%x, v%d" % (XA + k, 32 * k, XA))
    for g in range(1, 3):
        for k in range(4):
            a("v_add_u32 v%d, 0x%x, v%d" % (XA + 4 * g + k, 65536 * g, XA + k))
    a("v_lshrrev_b32 v%d, 2, v0" % t1)
    a("v_and_b32 v%d, 3, v%d" % (t1, t1))
    a("v_lshl_or_b32 v%d, v%d, 3, v%d" % (t1, t0, t1))
    a("v_lshlrev_b32 v%d, 6, v%d" % (t1, t1))
    a("v_and_b32 v%d, 16, v0" % t2)
    a("v_lshl_or_b32 v%d, v%d, 1, v%d" % (t1, t2, t1))
    a("v_and_b32 v%d, 3, v0" % t2)
    a("v_lshl_or_b32 v%d, v%d, 3, v%d" % (WV, t2, t1))
    a("v_and_b32 v%d, 1, v0" % t2)
    a("v_lshl_or_b32 v%d, v%d, 4, v%d" % (WQ, t2, t1))
    a("v_and_b32 v%d, 2, v0" % t2)
    a("v_lshl_or_b32 v%d, v%d, 2, v%d" % (WQ, t2, WQ))
    for g in range(1, 3):
        a("v_add_u32 v%d, 0x%x, v%d" % (WQ + g, 65536 * g, WQ))
        a("v_add_u32 v%d, 0x%x, v%d" % (WV + g, 65536 * g, WV))
    a("v_lshlrev_b32 v%d, 3, v%d" % (t1, t0))
    a("v_sub_u32 v%d, v%d, v%d" % (t1, VI, t1))
    for ks, I in ((0, I0), (1, I1)):
        if ks:
            a("v_subrev_u32 v%d, 16, v%d" % (t1, t1))
        a("v_and_b32 v%d, 1, v%d" % (t2, t1))
        a("v_lshlrev_b32 v%d, 4, v%d" % (t2, t2))
        a("v_mov_b32 v%d, 0x3f80" % t0)
        a("v_lshlrev_b32 v%d, v%d, v%d" % (t2, t2, t0))
        a("v_ashrrev_i32 v%d, 1, v%d" % (t0, t1))
        for d in range(4):
            a("v_cmp_eq_u32 vcc, %d, v%d" % (d, t0))
            a("v_cndmask_b32 v%d, 0, v%d, vcc" % (I + d, t2))
    for r in range(48):
        a("v_mov_b32 v%d, 0" % (ACQ + r))

    def reads(g):
        c, k = g >> 2, g & 3
        slot = c % 5
        grp, off = slot >> 1, (slot & 1) * SLOT
        b = FR + (g & 3) * 16
        a("ds_read_b128 v[%d:%d], v%d offset:%d" % (b, b + 3, XA + 4 * grp + k, off))
        for p in range(3):
            areg = (WQ if p < 2 else WV) + grp
            for hf in range(2):
                o = off + 16384 + p * 4096 + (16 * k + 4 * hf) * 64
                d = b + 4 + p * 4 + hf * 2
                a("ds_read_b64_tr_b16 v[%d:%d], v%d offset:%d" % (d, d + 1, areg, o))

    def mfmas(g):
        b = FR + (g & 3) * 16
        a("v_mfma_f32_32x32x16_bf16 v[%d:%d], v[%d:%d], v[%d:%d], v[%d:%d]" % (ACQ, ACQ + 15, b + 4, b + 7, b, b + 3, ACQ, ACQ + 15))
        a("v_mfma_f32_32x32x16_bf16 v[%d:%d], v[%d:%d], v[%d:%d], v[%d:%d]" % (ACK, ACK + 15, b + 8, b + 11, b, b + 3, ACK, ACK + 15))
        a("v_mfma_f32_32x32x16_bf16 v[%d:%d], v[%d:%d], v[%d:%d], v[%d:%d]" % (ACV, ACV + 15, b, b + 3, b + 12, b + 15, ACV, ACV + 15))

    st()
    a("s_barrier")
    st()
    dbgst(a, 1)
    for g in range(3):
        reads(g)
    for g in range(32):
        issued_after = min(31, g + 2) - g
        a("s_waitcnt lgkmcnt(%d)" % (7 * issued_after))
        mfmas(g)
        if g + 3 < 32:
            if (g + 3) % 4 == 0:
                a("s_waitcnt lgkmcnt(0)")
                a("s_barrier")
            reads(g + 3)
        if g == 2:
            a("s_waitcnt vmcnt(0)")
            wphi_finish(a, WF, A1, A2, VI)
        if g == 6:
            a("s_cmp_lg_u32 s14, 0")
            a("s_cbranch_scc1 K1_NOZERO")
            a("s_waitcnt vmcnt(0)")
            a("v_readfirstlane_b32 s19, v%d" % (T + 11))
            a("s_mov_b32 s20, 1")
            a("s_cmp_lg_u32 s19, 0")
            a("s_cbranch_scc1 K1_NOZERO")
            a("s_mov_b32 s20, 0")
            zero_kv(a, T + 30, VZ, S_HP)
            a.label("K1_NOZERO")
        if g == 14:
            a("s_cmp_lg_u32 s14, 0")
            a("s_cbranch_scc1 K1_NOFLAG")
            a("s_cmp_lg_u32 s20, 0")
            a("s_cbranch_scc1 K1_NOFLAG")
            a("s_waitcnt vmcnt(0)")
            a("v_mov_b32 v%d, 1" % (T + 10))
            a("s_mov_b64 exec, 1")
            a("global_atomic_add v%d, v%d, s[16:17] offset:4" % (VZ, T + 10))
            a("s_mov_b64 exec, -1")
            a.label("K1_NOFLAG")
        if g == 28:
            a("global_load_dword v%d, v%d, s[16:17] offset:4 sc1" % (VF, VZ))

    st()
    QF = FR
    KF = FR + 8
    VFm = FR + 16
    DP = FR + 32
    PH = FR + 48
    slot2 = 2 * SLOT
    for d in range(8):
        a("v_cvt_pk_bf16_f32 v%d, v%d, v%d" % (QF + d, ACQ + 2 * d, ACQ + 2 * d + 1))
    a("s_lshl_b32 s18, s3, 12")
    a("s_add_u32 s18, s18, 0x%x" % slot2)
    a("v_lshlrev_b32 v%d, 4, v0" % T)
    a("v_add_u32 v%d, s18, v%d" % (T, T))
    a("ds_write_b128 v%d, v[%d:%d]" % (T, QF, QF + 3))
    a("ds_write_b128 v%d, v[%d:%d] offset:1024" % (T, QF + 4, QF + 7))
    for d in range(8):
        a("v_cvt_pk_bf16_f32 v%d, v%d, v%d" % (KF + d, ACK + 2 * d, ACK + 2 * d + 1))
    a("s_waitcnt lgkmcnt(0)")
    a("s_barrier")
    st()
    dbgst(a, 2)
    a("v_mfma_f32_32x32x16_bf16 v[%d:%d], v[%d:%d], v[%d:%d], 0" % (DP, DP + 15, A1, A1 + 3, KF, KF + 3))
    a("v_mfma_f32_32x32x16_bf16 v[%d:%d], v[%d:%d], v[%d:%d], v[%d:%d]" % (DP, DP + 15, A2, A2 + 3, KF + 4, KF + 7, DP, DP + 15))
    for d in range(8):
        a("v_cvt_pk_bf16_f32 v%d, v%d, v%d" % (VFm + d, ACV + 2 * d, ACV + 2 * d + 1))
    AV0, AV1 = ACQ, ACQ + 8
    a("v_cmp_gt_u32 vcc, 16, v%d" % VI)
    a("v_mov_b32 v%d, 0x3f803f80" % (T + 1))
    for d in range(8):
        a("v_cndmask_b32 v%d, v%d, v%d, vcc" % (AV0 + d, T + 1, VFm + d))
        a("v_cndmask_b32 v%d, v%d, v%d, vcc" % (AV1 + d, VFm + d, T + 1))
    softmax_units(a, DP, T + 2, PH)
    st()
    for hd, D in ((0, ACK), (1, ACV)):
        p = PH + 8 * hd
        a("v_mfma_f32_32x32x16_bf16 v[%d:%d], v[%d:%d], v[%d:%d], 0" % (D, D + 15, p, p + 3, I0, I0 + 3))
        a("v_mfma_f32_32x32x16_bf16 v[%d:%d], v[%d:%d], v[%d:%d], v[%d:%d]" % (D, D + 15, p + 4, p + 7, I1, I1 + 3, D, D + 15))
    BK = FR
    for hd, D in ((0, ACK), (1, ACV)):
        for d in range(8):
            a("v_cvt_pk_bf16_f32 v%d, v%d, v%d" % (BK + 8 * hd + d, D + 2 * d, D + 2 * d + 1))
    KV0, KV1 = FR + 16, FR + 32
    for hd, D, AV in ((0, KV0, AV0), (1, KV1, AV1)):
        b = BK + 8 * hd
        a("v_mfma_f32_32x32x16_bf16 v[%d:%d], v[%d:%d], v[%d:%d], 0" % (D, D + 15, AV, AV + 3, b, b + 3))
        a("v_mfma_f32_32x32x16_bf16 v[%d:%d], v[%d:%d], v[%d:%d], v[%d:%d]" % (D, D + 15, AV + 4, AV + 7, b + 4, b + 7, D, D + 15))
    a("s_lshl_b32 s18, s3, 12")
    a("s_add_u32 s18, s18, 0x%x" % (slot2 + 16384))
    a("v_lshlrev_b32 v%d, 4, v0" % T)
    a("v_add_u32 v%d, s18, v%d" % (T + 1, T))
    a("ds_write_b128 v%d, v[%d:%d]" % (T + 1, KV0, KV0 + 3))
    a("ds_write_b128 v%d, v[%d:%d] offset:1024" % (T + 1, KV0 + 4, KV0 + 7))
    a("ds_write_b128 v%d, v[%d:%d] offset:2048" % (T + 1, KV1 + 8, KV1 + 11))
    a("ds_write_b128 v%d, v[%d:%d] offset:3072" % (T + 1, KV1 + 12, KV1 + 15))
    a("v_cmp_gt_u32 vcc, 32, v0")
    a("v_cndmask_b32 v%d, v%d, v%d, vcc" % (T + 2, KV1, KV0 + 8))
    a("s_lshl_b32 s18, s3, 12")
    a("s_add_u32 s18, s18, 0x%x" % (slot2 + 2048))
    a("v_lshlrev_b32 v%d, 2, v0" % (T + 3))
    a("v_add_u32 v%d, s18, v%d" % (T + 4, T + 3))
    a("ds_write_b32 v%d, v%d" % (T + 4, T + 2))
    a("s_waitcnt lgkmcnt(0)")
    st()
    a("s_barrier")
    st()
    a("s_lshl_b32 s18, s3, 10")
    a("s_add_u32 s18, s18, 0x%x" % (slot2 + 16384))
    a("v_add_u32 v%d, s18, v%d" % (T + 1, T))
    RB = FR
    for ww in range(4):
        a("ds_read_b128 v[%d:%d], v%d offset:%d" % (RB + 4 * ww, RB + 4 * ww + 3, T + 1, 4096 * ww))
    a("v_add_u32 v%d, 0x%x, v%d" % (T + 4, slot2 + 2048, T + 3))
    for ww in range(4):
        a("ds_read_b32 v%d, v%d offset:%d" % (RB + 16 + ww, T + 4, 4096 * ww))
    a("s_mov_b32 s21, 0")
    a.label("K1_POLL")
    a("s_waitcnt vmcnt(0)")
    a("v_readfirstlane_b32 s19, v%d" % VF)
    a("s_cmp_lg_u32 s19, 0")
    a("s_cbranch_scc1 K1_POLLDONE")
    a("s_add_u32 s21, s21, 1")
    a("s_cmp_lg_u32 s21, 4000")
    a("s_cbranch_scc1 K1_POLLMORE")
    a("v_mov_b32 v%d, 1" % (T + 10))
    a("s_mov_b64 exec, 1")
    a("global_atomic_add v%d, v%d, v%d, s[16:17] sc0" % (T + 11, VZ, T + 10))
    a("s_waitcnt vmcnt(0)")
    a("s_mov_b64 exec, -1")
    a("v_readfirstlane_b32 s19, v%d" % (T + 11))
    a("s_cmp_lg_u32 s19, 0")
    a("s_cbranch_scc1 K1_POLLMORE")
    zero_kv(a, T + 30, VZ, S_HP)
    a("s_waitcnt vmcnt(0)")
    a("s_mov_b64 exec, 1")
    a("global_atomic_add v%d, v%d, s[16:17] offset:4" % (VZ, T + 10))
    a("s_mov_b64 exec, -1")
    a.label("K1_POLLMORE")
    a("s_sleep 8")
    a("global_load_dword v%d, v%d, s[16:17] offset:4 sc1" % (VF, VZ))
    a("s_branch K1_POLL")
    a.label("K1_POLLDONE")
    st()
    a("s_waitcnt lgkmcnt(0)")
    for i in range(4):
        a("v_add_f32 v%d, v%d, v%d" % (RB + i, RB + i, RB + 4 + i))
        a("v_add_f32 v%d, v%d, v%d" % (RB + 8 + i, RB + 8 + i, RB + 12 + i))
    a("v_add_f32 v%d, v%d, v%d" % (RB + 16, RB + 16, RB + 17))
    a("v_add_f32 v%d, v%d, v%d" % (RB + 18, RB + 18, RB + 19))
    for i in range(4):
        a("v_add_f32 v%d, v%d, v%d" % (RB + i, RB + i, RB + 8 + i))
    a("v_add_f32 v%d, v%d, v%d" % (RB + 16, RB + 16, RB + 18))
    a("s_lshl_b32 s18, s%d, 12" % S_HP)
    a("s_lshl_b32 s19, s3, 10")
    a("s_add_u32 s18, s18, s19")
    for i in range(4):
        a("buffer_atomic_add_f32 v%d, v%d, s[%d:%d], s18 offen offset:%d" % (RB + i, T + 3, R_WS, R_WS + 3, 256 * i))
    a("s_cmp_lg_u32 s3, 0")
    a("s_cbranch_scc1 K1_CEND")
    a("s_lshl_b32 s18, s%d, 8" % S_HP)
    a("s_add_u32 s18, s18, 0x%x" % WS_Z)
    a("buffer_atomic_add_f32 v%d, v%d, s[%d:%d], s18 offen" % (RB + 16, T + 3, R_WS, R_WS + 3))
    a.label("K1_CEND")
    dbgst(a, 3)
    if STAMP:
        st()
        a("s_waitcnt vmcnt(0)")
        st()
        st.flush(26, T)
    a("s_endpgm")

    a.label("K1_HELPER")
    vm = VMQ()
    st = Stamper(a, 250, 0)
    st()
    a("s_sub_u32 s3, s3, 4")
    VX, VW, VB, VD = 1, 2, 3, 4
    t0, t1, t2 = 10, 11, 12
    a("s_and_b32 s18, s3, 1")
    a("s_lshl_b32 s18, s18, 2")
    a("v_lshrrev_b32 v%d, 4, v0" % t0)
    a("v_add_u32 v%d, s18, v%d" % (t1, t0))
    a("v_and_b32 v%d, 7, v%d" % (t1, t1))
    a("v_and_b32 v%d, 7, v0" % t2)
    a("v_xor_b32 v%d, v%d, v%d" % (t1, t1, t2))
    a("v_lshlrev_b32 v%d, 4, v%d" % (t1, t1))
    a("v_lshrrev_b32 v%d, 3, v0" % t2)
    a("v_lshl_or_b32 v%d, v%d, 10, v%d" % (VX, t2, t1))
    a("v_lshrrev_b32 v%d, 2, v0" % t1)
    a("v_mul_u32_u24 v%d, 0xc00, v%d" % (t1, t1))
    a("v_and_b32 v%d, 3, v0" % t2)
    a("v_lshl_or_b32 v%d, v%d, 4, v%d" % (VW, t2, t1))
    a("s_lshl_b32 s12, s%d, 17" % S_RT)
    a("s_lshl_b32 s18, s3, 13")
    a("s_add_u32 s12, s12, s18")
    a("s_mul_i32 s13, s3, 0xc000")
    a("s_lshl_b32 s18, s%d, 6" % S_HP)
    a("s_add_u32 s13, s13, s18")
    a("s_lshl_b32 s14, s3, 10")

    def stageA(c):
        slot = (c % 5) * SLOT
        a("s_add_u32 s22, s%d, %d" % (S_J, c))
        a("s_and_b32 s22, s22, 7")
        a("s_lshl_b32 s23, s22, 7")
        a("s_add_u32 s23, s23, s12")
        a("s_mul_i32 s24, s22, 0x30000")
        a("s_add_u32 s24, s24, s13")
        for m in range(4):
            a("s_add_u32 m0, s14, 0x%x" % (slot + m * 4096))
            a("s_add_u32 s18, s23, 0x%x" % (m * 32768))
            a("buffer_load_dwordx4 v%d, s[%d:%d], s18 offen lds" % (VX, R_X, R_X + 3))
        for p in range(3):
            a("s_add_u32 m0, s14, 0x%x" % (slot + 16384 + p * 4096))
            a("s_add_u32 s18, s24, 0x%x" % (p * 1024))
            a("buffer_load_dwordx4 v%d, s[%d:%d], s18 offen lds" % (VW, R_W, R_W + 3))
        vm.issue(("c", c), 7)

    uid = [0]

    def stageB(c):
        cb = c - 8
        slot = (c % 5) * SLOT
        a("s_add_u32 s22, s%d, %d" % (S_J, cb))
        a("s_and_b32 s22, s22, 3")
        a("s_lshl_b32 s22, s22, 8")
        a("s_add_u32 s23, s15, s22")
        a("s_add_u32 s24, s16, s22")
        for m in range(4):
            a("s_add_u32 m0, s14, 0x%x" % (slot + m * 4096))
            a("s_add_u32 s18, s23, 0x%x" % (m * 512 * 1024))
            a("buffer_load_dwordx4 v%d, s[%d:%d], s18 offen lds" % (VB, R_XB, R_XB + 3))
        for m in range(4):
            a("s_add_u32 m0, s14, 0x%x" % (slot + 16384 + m * 4096))
            a("s_add_u32 s18, s24, 0x%x" % ((m & 1) * 16384))
            R = R_DR if m < 2 else R_DI
            if m == 2:
                uid[0] += 1
                L1, L2 = "K1_SP%d" % uid[0], "K1_SPE%d" % uid[0]
                a("s_cmp_eq_u32 s17, 0")
                a("s_cbranch_scc1 %s" % L1)
                a("buffer_load_dwordx4 v%d, s[%d:%d], s18 offen lds" % (VD, R, R + 3))
                a("s_branch %s" % L2)
                a.label(L1)
                a("s_mov_b64 exec, 0xffff")
                a("s_add_u32 s19, s22, 0x%x" % (256 * 1024))
                a("buffer_load_dwordx4 v%d, s[%d:%d], s19 offen lds" % (VD, R_DR, R_DR + 3))
                a("s_not_b64 exec, exec")
                a("buffer_load_dwordx4 v%d, s[%d:%d], s18 offen lds" % (VD, R, R + 3))
                a("s_mov_b64 exec, -1")
                a.label(L2)
            else:
                a("buffer_load_dwordx4 v%d, s[%d:%d], s18 offen lds" % (VD, R, R + 3))
        vm.issue(("c", c), 8)

    for c in range(2):
        stageA(c)
    a("s_lshl_b32 s18, s3, 2")
    a("v_add_u32 v%d, s18, v%d" % (t1, t0))
    a("v_and_b32 v%d, 15, v0" % t2)
    a("v_xor_b32 v%d, v%d, v%d" % (t1, t1, t2))
    a("v_lshlrev_b32 v%d, 4, v%d" % (t1, t1))
    a("v_lshl_or_b32 v%d, v%d, 15, v%d" % (VB, t0, t1))
    a("v_lshl_or_b32 v%d, v%d, 10, v%d" % (VD, t0, t1))
    a("s_lshl_b32 s15, s3, 7")
    a("s_add_u32 s15, s15, s%d" % S_S2)
    a("s_lshl_b32 s15, s15, 10")
    a("s_lshl_b32 s16, s%d, 5" % S_J)
    a("s_lshl_b32 s18, s3, 2")
    a("s_add_u32 s16, s16, s18")
    a("s_lshl_b32 s16, s16, 10")
    a("s_or_b32 s17, s%d, s3" % S_J)
    for c in range(2, 5):
        stageA(c)
    A1, A2 = 20, 24
    WF = 28
    VI = 36
    FF = 40
    wphi_frags(a, vm, 0, WF, A1, A2, 60, S_HP)
    a("v_mov_b32 v%d, v60" % VI)
    a("s_lshr_b32 s18, s3, 1")
    a("s_lshl_b32 s18, s18, 5")
    a("v_add_u32 v%d, s18, v%d" % (t1, VI))
    a("v_lshrrev_b32 v%d, 5, v0" % t2)
    a("v_lshlrev_b32 v%d, 4, v%d" % (t2, t2))
    a("v_lshl_or_b32 v%d, v%d, 17, v%d" % (13, t1, t2))
    a("v_subrev_u32 v%d, 32, v%d" % (14, t1))
    a("v_max_i32 v%d, 0, v%d" % (14, 14))
    a("v_lshl_or_b32 v%d, v%d, 17, v%d" % (14, 14, t2))
    a("v_mov_b32 v%d, v%d" % (15, t1))
    for kk in range(4):
        a("buffer_load_dwordx4 v[%d:%d], v13, s[%d:%d], 0 offen offset:%d" % (FF + 4 * kk, FF + 4 * kk + 3, R_CR, R_CR + 3, 32 * kk))
    for kk in range(4):
        a("buffer_load_dwordx4 v[%d:%d], v14, s[%d:%d], 0 offen offset:%d" % (FF + 16 + 4 * kk, FF + 16 + 4 * kk + 3, R_CI, R_CI + 3, 32 * kk))
    vm.issue("f", 8)

    st()
    for c in range(8):
        a("s_waitcnt vmcnt(%d)" % vm.wait_n(("c", c)))
        if c in (0, 1, 4, 7):
            st()
        a("s_barrier")
        if c >= 1:
            if c + 4 < 8:
                stageA(c + 4)
            else:
                stageB(c + 4)
    wphi_finish(a, WF, A1, A2, VI)
    a("v_cmp_lt_u32 vcc, 32, v15")
    for i in range(16):
        a("v_cndmask_b32 v%d, v%d, v%d, vcc" % (FF + i, FF + i, FF + 16 + i))
    BA, BB = 72, 80
    a("v_and_b32 v%d, 3, v%d" % (t1, VI))
    a("v_and_b32 v%d, 4, v%d" % (t2, VI))
    a("v_lshl_or_b32 v%d, v%d, 1, v%d" % (t1, t2, t1))
    a("v_and_b32 v%d, 8, v%d" % (t2, VI))
    a("v_lshrrev_b32 v%d, 1, v%d" % (t2, t2))
    a("v_or_b32 v%d, v%d, v%d" % (t1, t1, t2))
    a("v_and_b32 v%d, 16, v%d" % (t2, VI))
    a("v_or_b32 v%d, v%d, v%d" % (t1, t1, t2))
    a("v_lshrrev_b32 v%d, 5, v0" % t0)
    a("v_and_b32 v%d, 15, v%d" % (t2, t1))
    a("v_xor_b32 v%d, v%d, v%d" % (t2, t2, t0))
    a("v_lshlrev_b32 v%d, 4, v%d" % (t2, t2))
    a("v_lshl_or_b32 v%d, v%d, 8, v%d" % (t2, t1, t2))
    a("s_lshr_b32 s18, s3, 1")
    a("s_lshl_b32 s18, s18, 13")
    a("s_add_u32 s18, s18, 0x%x" % (3 * SLOT))
    a("v_add_u32 v%d, s18, v%d" % (BA, t2))
    a("s_and_b32 s18, s3, 1")
    a("s_lshl_b32 s18, s18, 13")
    a("s_add_u32 s18, s18, 0x%x" % (3 * SLOT + 16384))
    a("v_add_u32 v%d, s18, v%d" % (BB, t2))
    for k in range(1, 8):
        a("v_xor_b32 v%d, 0x%x, v%d" % (BA + k, 32 * k, BA))
        a("v_xor_b32 v%d, 0x%x, v%d" % (BB + k, 32 * k, BB))
    ACU = 96
    for r in range(16):
        a("v_mov_b32 v%d, 0" % (ACU + r))
    a("s_barrier")
    st()
    QF = 112
    DP = 120
    PH = 136
    T = 152
    a("s_lshl_b32 s18, s3, 12")
    a("s_add_u32 s18, s18, 0x%x" % (2 * SLOT))
    a("v_lshlrev_b32 v%d, 4, v0" % T)
    a("v_add_u32 v%d, s18, v%d" % (T + 1, T))
    a("ds_read_b128 v[%d:%d], v%d" % (QF, QF + 3, T + 1))
    a("ds_read_b128 v[%d:%d], v%d offset:1024" % (QF + 4, QF + 7, T + 1))
    a("s_waitcnt lgkmcnt(1)")
    a("v_mfma_f32_32x32x16_bf16 v[%d:%d], v[%d:%d], v[%d:%d], 0" % (DP, DP + 15, A1, A1 + 3, QF, QF + 3))
    a("s_waitcnt lgkmcnt(0)")
    a("v_mfma_f32_32x32x16_bf16 v[%d:%d], v[%d:%d], v[%d:%d], v[%d:%d]" % (DP, DP + 15, A2, A2 + 3, QF + 4, QF + 7, DP, DP + 15))
    softmax_units(a, DP, T + 2, PH)
    a("s_lshl_b32 s18, s%d, 2" % S_RT)
    a("s_add_u32 s18, s18, s3")
    a("s_lshl_b32 s18, s18, 16")
    a("s_lshl_b32 s19, s%d, 12" % S_HP)
    a("s_add_u32 s18, s18, s19")
    a("s_add_u32 s18, s18, 0x%x" % WS_PHI)
    for u in range(4):
        a("buffer_store_dwordx4 v[%d:%d], v%d, s[%d:%d], s18 offen offset:%d" % (PH + 4 * u, PH + 4 * u + 3, T, R_WS, R_WS + 3, 1024 * u))
    vm.issue("phi", 4)
    st()
    a("s_waitcnt vmcnt(%d)" % vm.wait_n(("c", 9)))
    st()
    a("s_barrier")
    st()
    BF = 160
    NB = 6
    DIST = 4

    def breads(gs):
        c = 8 + gs // 8
        k = gs % 8
        off = (SLOT if c in (9, 11) else 0)
        b = BF + (gs % NB) * 8
        a("ds_read_b128 v[%d:%d], v%d offset:%d" % (b, b + 3, BA + k, off))
        a("ds_read_b128 v[%d:%d], v%d offset:%d" % (b + 4, b + 7, BB + k, off))

    def bmf(gs):
        b = BF + (gs % NB) * 8
        a("v_mfma_f32_32x32x16_bf16 v[%d:%d], v[%d:%d], v[%d:%d], v[%d:%d]" % (ACU, ACU + 15, b, b + 3, b + 4, b + 7, ACU, ACU + 15))

    for half in range(2):
        g0 = 16 * half
        if half == 1:
            a("s_waitcnt vmcnt(%d)" % vm.wait_n(("c", 11)))
            st()
            a("s_barrier")
            st()
            for k in range(8):
                a("v_subrev_u32 v%d, 0x%x, v%d" % (BA + k, 3 * SLOT, BA + k))
                a("v_subrev_u32 v%d, 0x%x, v%d" % (BB + k, 3 * SLOT, BB + k))
        for g in range(g0, g0 + DIST):
            breads(g)
        for g in range(g0, g0 + 16):
            after = min(g0 + 15, g + DIST - 1) - g
            a("s_waitcnt lgkmcnt(%d)" % (2 * after))
            bmf(g)
            if g + DIST < g0 + 16:
                breads(g + DIST)
    st()
    UF = 112
    for d in range(8):
        a("v_cvt_pk_bf16_f32 v%d, v%d, v%d" % (UF + d, ACU + 2 * d, ACU + 2 * d + 1))
    a("s_lshl_b32 s18, s3, 11")
    a("s_add_u32 s18, s18, 0x%x" % (3 * SLOT))
    a("v_add_u32 v%d, s18, v%d" % (T + 1, T))
    a("ds_write_b128 v%d, v[%d:%d]" % (T + 1, UF, UF + 3))
    a("ds_write_b128 v%d, v[%d:%d] offset:1024" % (T + 1, UF + 4, UF + 7))
    a("s_xor_b32 s18, s3, 2")
    a("s_lshl_b32 s18, s18, 11")
    a("s_add_u32 s18, s18, 0x%x" % (3 * SLOT))
    a("v_add_u32 v%d, s18, v%d" % (T + 2, T))
    a("s_waitcnt lgkmcnt(0)")
    a("s_barrier")
    a("ds_read_b128 v[%d:%d], v%d" % (UF + 8, UF + 11, T + 2))
    a("ds_read_b128 v[%d:%d], v%d offset:1024" % (UF + 12, UF + 15, T + 2))
    DH = 120 + 16
    a("s_lshr_b32 s18, s3, 1")
    a("s_cmp_eq_u32 s18, 0")
    a("s_cbranch_scc1 K1_SA0")
    for i in range(8):
        a("v_swap_b32 v%d, v%d" % (FF + i, FF + 8 + i))
    a.label("K1_SA0")
    a("v_mfma_f32_32x32x16_bf16 v[%d:%d], v[%d:%d], v[%d:%d], 0" % (DH, DH + 15, UF, UF + 3, FF, FF + 3))
    a("v_mfma_f32_32x32x16_bf16 v[%d:%d], v[%d:%d], v[%d:%d], v[%d:%d]" % (DH, DH + 15, UF + 4, UF + 7, FF + 4, FF + 7, DH, DH + 15))
    a("s_waitcnt lgkmcnt(1)")
    a("v_mfma_f32_32x32x16_bf16 v[%d:%d], v[%d:%d], v[%d:%d], v[%d:%d]" % (DH, DH + 15, UF + 8, UF + 11, FF + 8, FF + 11, DH, DH + 15))
    a("s_waitcnt lgkmcnt(0)")
    a("v_mfma_f32_32x32x16_bf16 v[%d:%d], v[%d:%d], v[%d:%d], v[%d:%d]" % (DH, DH + 15, UF + 12, UF + 15, FF + 12, FF + 15, DH, DH + 15))
    HP = 112
    for d in range(8):
        a("v_cvt_pk_bf16_f32 v%d, v%d, v%d" % (HP + d, DH + 2 * d, DH + 2 * d + 1))
    a("v_lshrrev_b32 v%d, 5, v0" % t0)
    a("v_lshlrev_b32 v%d, 4, v%d" % (t0, t0))
    a("v_lshl_or_b32 v%d, v15, 10, v%d" % (t0, t0))
    a("s_lshl_b32 s18, s%d, 16" % S_S2)
    a("s_lshl_b32 s19, s%d, 7" % S_J)
    a("s_add_u32 s18, s18, s19")
    a("s_and_b32 s19, s3, 1")
    a("s_lshl_b32 s19, s19, 6")
    a("s_add_u32 s18, s18, s19")
    a("s_add_u32 s18, s18, 0x%x" % WS_H)
    a("buffer_store_dwordx4 v[%d:%d], v%d, s[%d:%d], s18 offen" % (HP, HP + 3, t0, R_WS, R_WS + 3))
    a("buffer_store_dwordx4 v[%d:%d], v%d, s[%d:%d], s18 offen offset:32" % (HP + 4, HP + 7, t0, R_WS, R_WS + 3))
    dbgst(a, 4)
    if STAMP:
        st()
        a("s_waitcnt vmcnt(0)")
        st()
        st.flush(26, t0)
    a.label("K1_END")
    a("s_endpgm")


def zero_kv(a, TT, VZ, S_HP):
    base = (TT + 3) & ~3
    for i in range(4):
        a("v_mov_b32 v%d, 0" % (base + i))
    a("v_lshlrev_b32 v%d, 4, v0" % (base + 4))
    a("s_lshl_b32 s18, s%d, 12" % S_HP)
    for i in range(4):
        a("buffer_store_dwordx4 v[%d:%d], v%d, s[%d:%d], s18 offen offset:%d sc1" % (base, base + 3, base + 4, R_WS, R_WS + 3, 1024 * i))
    a("s_lshl_b32 s18, s%d, 8" % S_HP)
    a("s_add_u32 s18, s18, 0x%x" % WS_Z)
    a("s_mov_b64 exec, 0xffff")
    a("buffer_store_dwordx4 v[%d:%d], v%d, s[%d:%d], s18 offen sc1" % (base, base + 3, base + 4, R_WS, R_WS + 3))
    a("s_mov_b64 exec, -1")


def kd(name, vgpr):
    return """.p2align 6
.amdhsa_kernel %s
  .amdhsa_next_free_vgpr %d
  .amdhsa_next_free_sgpr 102
  .amdhsa_accum_offset %d
  .amdhsa_group_segment_fixed_size 0
  .amdhsa_kernarg_size 96
  .amdhsa_user_sgpr_count 2
  .amdhsa_user_sgpr_kernarg_segment_ptr 1
  .amdhsa_system_sgpr_workgroup_id_x 1
.end_amdhsa_kernel
""" % (name, vgpr, vgpr)


def main():
    out = sys.argv[1] if len(sys.argv) > 1 else "cdna_kernels/%s.s" % NAME
    only1 = "--k1" in sys.argv
    global STAMP
    if "--dbgst" in sys.argv:
        import gen
        gen.DBGST = True
        globals()["DBGST"] = True
    if "--stamp" in sys.argv:
        STAMP = True
        import gen
        gen.STAMP = True
    hdr = open("cdna_kernels/%s.s.ref" % NAME).read().split("; Override launch geometry")[0]
    s = hdr
    s += "; @launch kernel=k1_kernel grid=(256,1,1) block=(512,1,1) lds=163840\n"
    if not only1:
        s += "; @launch kernel=k2_kernel grid=(256,1,1) block=(512,1,1) lds=163840\n"
    s += '.amdgcn_target "amdgcn-amd-amdhsa--gfx950"\n.text\n'
    a = Asm()
    gen_k1(a)
    s += a.text()
    if not only1:
        from gen2 import gen_k2
        b = Asm()
        gen_k2(b)
        s += b.text()
    s += '.section .rodata,"a"\n'
    s += kd("k1_kernel", 256)
    if not only1:
        s += kd("k2_kernel", 256)
    open(out, "w").write(s)
    print("wrote", out, len(s), "bytes; k1 instrs", a.ninstr)


if __name__ == "__main__":
    main()
```

```python
import sys
from dsl import Asm, vr, sr

NAME = "concat_heads__linear_kernel_hedgehog__spectral_fnet__prompt"

WS_KV = 0
WS_Z = 65536
WS_PHI = 1 << 20
WS_H = 8 << 20
WS_SIZE = 64 << 20

LOG2E = 0x3FB8AA3B
NLOG2E = 0xBFB8AA3B

SLOT = 32768


class VMQ:
    def __init__(self):
        self.q = []

    def issue(self, tag, n=1):
        self.q += [tag] * n

    def wait_n(self, tag):
        idx = max(i for i, t in enumerate(self.q) if t == tag)
        return len(self.q) - 1 - idx


def srd(a, d, lo, nbytes):
    a("s_mov_b32 s%d, s%d" % (d, lo))
    a("s_mov_b32 s%d, s%d" % (d + 1, lo + 1))
    a("s_mov_b32 s%d, 0x%x" % (d + 2, nbytes))
    a("s_mov_b32 s%d, 0x00020000" % (d + 3))


P_X, P_W, P_WP, P_WO, P_XB, P_CR, P_CI, P_DR = 32, 34, 36, 38, 40, 42, 44, 46
P_DI, P_OUT, P_DBG, P_WS = 48, 50, 52, 54
R_X, R_W, R_XB, R_DR, R_DI, R_WS, R_CR, R_CI, R_WP, R_WO, R_OUT = 56, 60, 64, 68, 72, 76, 80, 84, 88, 92, 96


def load_ptrs(a):
    a("s_load_dwordx16 s[32:47], s[0:1], 0")
    a("s_load_dwordx8 s[48:55], s[0:1], 64")


def softmax_units(a, X, T, P):
    for r in range(0, 16, 2):
        t = T + r // 2
        a("v_cvt_pk_bf16_f32 v%d, v%d, v%d" % (t, X + r, X + r + 1))
    for r in range(0, 16, 2):
        t = T + r // 2
        a("v_lshlrev_b32 v%d, 16, v%d" % (X + r, t))
        a("v_and_b32 v%d, 0xffff0000, v%d" % (X + r + 1, t))
    MX = [T + 0, T + 1]
    MN = [T + 2, T + 3]
    TX = [T + 4, T + 5]
    TN = [T + 6, T + 7]
    for hd in range(2):
        x = X + 8 * hd
        a("v_max3_f32 v%d, v%d, v%d, v%d" % (MX[hd], x, x + 1, x + 2))
        a("v_min3_f32 v%d, v%d, v%d, v%d" % (MN[hd], x, x + 1, x + 2))
    for k in (3, 5):
        for hd in range(2):
            x = X + 8 * hd
            a("v_max3_f32 v%d, v%d, v%d, v%d" % (MX[hd], MX[hd], x + k, x + k + 1))
            a("v_min3_f32 v%d, v%d, v%d, v%d" % (MN[hd], MN[hd], x + k, x + k + 1))
    for hd in range(2):
        x = X + 8 * hd
        a("v_max_f32 v%d, v%d, v%d" % (MX[hd], MX[hd], x + 7))
        a("v_min_f32 v%d, v%d, v%d" % (MN[hd], MN[hd], x + 7))
    for hd in range(2):
        a("v_mov_b32 v%d, v%d" % (TX[hd], MX[hd]))
        a("v_mov_b32 v%d, v%d" % (TN[hd], MN[hd]))
    for hd in range(2):
        a("v_permlane32_swap_b32 v%d, v%d" % (MX[hd], TX[hd]))
        a("v_permlane32_swap_b32 v%d, v%d" % (MN[hd], TN[hd]))
    for hd in range(2):
        a("v_max_f32 v%d, v%d, v%d" % (MX[hd], MX[hd], TX[hd]))
        a("v_min_f32 v%d, v%d, v%d" % (MN[hd], MN[hd], TN[hd]))
    for hd in range(2):
        a("v_mul_f32 v%d, s29, v%d" % (MX[hd], MX[hd]))
        a("v_mul_f32 v%d, s28, v%d" % (MN[hd], MN[hd]))
    EM = T + 8
    for r in range(16):
        hd = r >> 3
        a("v_fma_f32 v%d, v%d, s29, v%d" % (EM + r, X + r, MN[hd]))
        a("v_fma_f32 v%d, v%d, s28, v%d" % (X + r, X + r, MX[hd]))
    for r in range(16):
        a("v_exp_f32 v%d, v%d" % (EM + r, EM + r))
        a("v_exp_f32 v%d, v%d" % (X + r, X + r))
    SP = [T + 0, T + 1]
    SM = [T + 2, T + 3]
    for hd in range(2):
        a("v_add_f32 v%d, v%d, v%d" % (SP[hd], X + 8 * hd, X + 8 * hd + 1))
        a("v_add_f32 v%d, v%d, v%d" % (SM[hd], EM + 8 * hd, EM + 8 * hd + 1))
        a("v_add_f32 v%d, v%d, v%d" % (TX[hd], X + 8 * hd + 2, X + 8 * hd + 3))
        a("v_add_f32 v%d, v%d, v%d" % (TN[hd], EM + 8 * hd + 2, EM + 8 * hd + 3))
    for k in (4, 6):
        for hd in range(2):
            a("v_add_f32 v%d, v%d, v%d" % (SP[hd], SP[hd], X + 8 * hd + k))
            a("v_add_f32 v%d, v%d, v%d" % (SM[hd], SM[hd], EM + 8 * hd + k))
            a("v_add_f32 v%d, v%d, v%d" % (TX[hd], TX[hd], X + 8 * hd + k + 1))
            a("v_add_f32 v%d, v%d, v%d" % (TN[hd], TN[hd], EM + 8 * hd + k + 1))
    for hd in range(2):
        a("v_add_f32 v%d, v%d, v%d" % (SP[hd], SP[hd], TX[hd]))
        a("v_add_f32 v%d, v%d, v%d" % (SM[hd], SM[hd], TN[hd]))
    for hd in range(2):
        a("v_mov_b32 v%d, v%d" % (TX[hd], SP[hd]))
        a("v_mov_b32 v%d, v%d" % (TN[hd], SM[hd]))
    for hd in range(2):
        a("v_permlane32_swap_b32 v%d, v%d" % (SP[hd], TX[hd]))
        a("v_permlane32_swap_b32 v%d, v%d" % (SM[hd], TN[hd]))
    for hd in range(2):
        a("v_add_f32 v%d, v%d, v%d" % (SP[hd], SP[hd], TX[hd]))
        a("v_add_f32 v%d, v%d, v%d" % (SM[hd], SM[hd], TN[hd]))
    for hd in range(2):
        a("v_rcp_f32 v%d, v%d" % (SP[hd], SP[hd]))
        a("v_rcp_f32 v%d, v%d" % (SM[hd], SM[hd]))
    for r in range(16):
        hd = r >> 3
        a("v_mul_f32 v%d, v%d, v%d" % (X + r, X + r, SP[hd]))
        a("v_mul_f32 v%d, v%d, v%d" % (EM + r, EM + r, SM[hd]))
    for hd in range(2):
        for d in range(4):
            a("v_cvt_pk_bf16_f32 v%d, v%d, v%d" % (P + 8 * hd + d, X + 8 * hd + 2 * d, X + 8 * hd + 2 * d + 1))
            a("v_cvt_pk_bf16_f32 v%d, v%d, v%d" % (P + 8 * hd + 4 + d, EM + 8 * hd + 2 * d, EM + 8 * hd + 2 * d + 1))


def wphi_frags(a, vm, LANE, WF, A1, A2, T, s_hp):
    a("v_and_b32 v%d, 31, v%d" % (T, LANE))
    a("v_lshrrev_b32 v%d, 5, v%d" % (T + 1, LANE))
    a("v_and_b32 v%d, 3, v%d" % (T + 2, T))
    a("v_and_b32 v%d, 4, v%d" % (T + 3, T))
    a("v_lshl_or_b32 v%d, v%d, 1, v%d" % (T + 2, T + 3, T + 2))
    a("v_and_b32 v%d, 8, v%d" % (T + 3, T))
    a("v_lshrrev_b32 v%d, 1, v%d" % (T + 3, T + 3))
    a("v_or_b32 v%d, v%d, v%d" % (T + 2, T + 2, T + 3))
    a("v_lshrrev_b32 v%d, 4, v%d" % (T + 3, T))
    a("v_lshl_or_b32 v%d, v%d, 8, v%d" % (T + 2, T + 3, T + 2))
    a("v_lshl_or_b32 v%d, v%d, 7, v%d" % (T + 2, T + 1, T + 2))
    a("v_lshlrev_b32 v%d, 1, v%d" % (T + 2, T + 2))
    a("s_lshl_b32 s27, s%d, 10" % s_hp)
    for j in range(8):
        a("buffer_load_ushort v%d, v%d, s[%d:%d], s27 offen offset:%d" % (WF + j, T + 2, R_WP, R_WP + 3, j * 32))
    vm.issue("wphi", 8)
    return T


def wphi_finish(a, WF, A1, A2, Ti):
    for d in range(4):
        a("v_lshl_or_b32 v%d, v%d, 16, v%d" % (WF + d * 2, WF + 2 * d + 1, WF + 2 * d))
    a("v_cmp_gt_u32 vcc, 16, v%d" % Ti)
    for d in range(4):
        a("v_cndmask_b32 v%d, 0, v%d, vcc" % (A1 + d, WF + 2 * d))
        a("v_cndmask_b32 v%d, v%d, 0, vcc" % (A2 + d, WF + 2 * d))


STAMP = False
WS_ST = 32 << 20


class Stamper:
    def __init__(self, a, vreg, kid):
        self.a, self.v, self.k, self.n = a, vreg, kid, 0

    def __call__(self):
        if not STAMP:
            return
        a = self.a
        a("s_memrealtime s[100:101]")
        a("s_waitcnt lgkmcnt(0)")
        a("v_writelane_b32 v%d, s100, %d" % (self.v, self.n))
        if self.n == 0:
            a("s_memtime s[100:101]")
            a("s_waitcnt lgkmcnt(0)")
            a("v_writelane_b32 v%d, s100, 62" % self.v)
        self.n += 1

    def flush(self, wave_sgpr_expr_reg, t0):
        if not STAMP:
            return
        a = self.a
        a("s_memtime s[100:101]")
        a("s_waitcnt lgkmcnt(0)")
        a("v_writelane_b32 v%d, s100, 63" % self.v)
        a("s_lshl_b32 s100, s2, 3")
        a("s_add_u32 s100, s100, s%d" % wave_sgpr_expr_reg)
        a("s_lshl_b32 s100, s100, 8")
        a("s_add_u32 s100, s100, 0x%x" % (WS_ST + self.k * 256 * 8 * 256))
        a("v_mbcnt_lo_u32_b32 v%d, -1, 0" % t0)
        a("v_mbcnt_hi_u32_b32 v%d, -1, v%d" % (t0, t0))
        a("v_lshlrev_b32 v%d, 2, v%d" % (t0, t0))
        a("buffer_store_dword v%d, v%d, s[%d:%d], s100 offen" % (self.v, t0, R_WS, R_WS + 3))


DBGST = False
OPT = dict(touch=1, rot=0, wotouch=1)


def dbgst(a, word, inv=False, k2=False, wave_sgpr=26, vr0=252):
    if not DBGST:
        return
    global _dbg_uid
    _dbg_uid += 1
    L = "DBGST_w%d" % word
    a("s_and_b32 s100, s%d, 3" % wave_sgpr)
    a("s_cmp_lg_u32 s100, 0")
    a("s_cbranch_scc1 %s" % L)
    a("s_memrealtime s[100:101]")
    a("s_waitcnt lgkmcnt(0)")
    if inv:
        a("s_not_b32 s100, s100")
    a("v_mov_b32 v%d, s100" % vr0)
    a("v_mov_b32 v%d, 0" % (vr0 + 1))
    a("s_mov_b64 exec, 1")
    a("global_atomic_umax v%d, v%d, s[%d:%d] offset:%d" % (vr0 + 1, vr0, P_DBG, P_DBG + 1, word * 4 - (512 if k2 else 0)))
    a("s_mov_b64 exec, -1")
    a.label(L)


_dbg_uid = 0


def touches(a, T):
    VXo, VWo, VBo, VDo, D0 = T, T + 1, T + 2, T + 3, T + 4
    a("v_lshlrev_b32 v%d, 10, v0" % VXo)
    a("v_lshrrev_b32 v%d, 2, v0" % VWo)
    a("v_mul_u32_u24 v%d, 0xc00, v%d" % (VWo, VWo))
    a("v_and_b32 v%d, 3, v0" % D0)
    a("v_lshl_or_b32 v%d, v%d, 7, v%d" % (VWo, D0, VWo))
    a("v_and_b32 v%d, 1, v0" % D0)
    a("v_lshlrev_b32 v%d, 7, v%d" % (D0, D0))
    a("v_lshrrev_b32 v%d, 1, v0" % VDo)
    a("v_lshl_or_b32 v%d, v%d, 10, v%d" % (VDo, VDo, D0))
    a("v_and_b32 v%d, 0x1fff, v%d" % (VBo, VDo))
    a("v_and_b32 v%d, 0xfff, v%d" % (VBo, VBo))
    a("v_lshrrev_b32 v%d, 3, v0" % D0)
    a("v_lshl_or_b32 v%d, v%d, 15, v%d" % (VBo, D0, VBo))
    a("s_lshl_b32 s18, s5, 2")
    a("s_add_u32 s18, s18, s3")
    a("s_lshr_b32 s19, s4, 1")
    a("s_lshl_b32 s19, s19, 19")
    a("s_and_b32 s20, s4, 1")
    a("s_lshl_b32 s20, s20, 9")

    def atouch(nreg, dst, uid):
        a("s_mul_i32 s22, s%d, 205" % nreg)
        a("s_lshr_b32 s22, s22, 12")
        a("s_mul_i32 s23, s22, 20")
        a("s_sub_u32 s23, s%d, s23" % nreg)
        a("s_cmp_ge_u32 s23, 8")
        a("s_cbranch_scc1 K1_TW%d" % uid)
        a("s_lshl_b32 s23, s23, 16")
        a("s_lshl_b32 s22, s22, 7")
        a("s_add_u32 s23, s23, s22")
        a("s_add_u32 s23, s23, s19")
        a("buffer_load_dword v%d, v%d, s[%d:%d], s23 offen" % (dst, VXo, R_X, R_X + 3))
        a("s_branch K1_TE%d" % uid)
        a.label("K1_TW%d" % uid)
        a("s_sub_u32 s23, s23, 8")
        a("s_lshr_b32 s24, s23, 2")
        a("s_and_b32 s23, s23, 3")
        a("s_lshl_b32 s22, s22, 2")
        a("s_add_u32 s22, s22, s23")
        a("s_mul_i32 s22, s22, 0xc000")
        a("s_lshl_b32 s24, s24, 10")
        a("s_add_u32 s22, s22, s24")
        a("s_add_u32 s22, s22, s20")
        a("buffer_load_dword v%d, v%d, s[%d:%d], s22 offen" % (dst, VWo, R_W, R_W + 3))
        a.label("K1_TE%d" % uid)

    atouch(18, D0, 0)
    a("s_cmp_ge_u32 s18, 32")
    a("s_cbranch_scc1 K1_TB")
    a("s_add_u32 s21, s18, 128")
    atouch(21, D0 + 1, 1)
    a("s_branch K1_TDONE")
    a.label("K1_TB")
    a("s_sub_u32 s21, s18, 32")
    a("s_mul_i32 s22, s21, 171")
    a("s_lshr_b32 s22, s22, 12")
    a("s_mul_i32 s23, s22, 24")
    a("s_sub_u32 s23, s21, s23")
    a("s_lshl_b32 s22, s22, 8")
    a("s_cmp_ge_u32 s23, 8")
    a("s_cbranch_scc1 K1_TBD")
    a("s_lshl_b32 s23, s23, 18")
    a("s_lshl_b32 s24, s4, 12")
    a("s_add_u32 s23, s23, s24")
    a("s_add_u32 s23, s23, s22")
    a("buffer_load_dword v%d, v%d, s[%d:%d], s23 offen" % (D0 + 1, VBo, R_XB, R_XB + 3))
    a("s_branch K1_TDONE")
    a.label("K1_TBD")
    a("s_sub_u32 s23, s23, 8")
    a("s_and_b32 s24, s23, 7")
    a("s_lshl_b32 s24, s24, 15")
    a("s_add_u32 s24, s24, s22")
    a("s_cmp_ge_u32 s23, 8")
    a("s_cbranch_scc1 K1_TBI")
    a("buffer_load_dword v%d, v%d, s[%d:%d], s24 offen" % (D0 + 1, VDo, R_DR, R_DR + 3))
    a("s_branch K1_TDONE")
    a.label("K1_TBI")
    a("buffer_load_dword v%d, v%d, s[%d:%d], s24 offen" % (D0 + 1, VDo, R_DI, R_DI + 3))
    a.label("K1_TDONE")
    return 2


def wotouch(a, T):
    a("s_lshl_b32 s18, s5, 2")
    a("s_add_u32 s18, s18, s3")
    a("s_cmp_ge_u32 s18, 64")
    a("s_cbranch_scc1 K1_WOT")
    a("s_lshl_b32 s18, s18, 13")
    a("v_lshlrev_b32 v%d, 7, v0" % T)
    a("buffer_load_dword v%d, v%d, s[%d:%d], s18 offen" % (T + 1, T, R_WO, R_WO + 3))
    a.label("K1_WOT")


def gen_k1(a):
    K = "k1_kernel"
    a.raw(".globl %s\n.p2align 8\n.type %s,@function\n%s:" % (K, K, K))
    a("s_cmp_ge_u32 s2, 256")
    a("s_cbranch_scc1 K1_END")
    load_ptrs(a)
    a("v_lshrrev_b32 v1, 6, v0")
    a("v_and_b32 v0, 63, v0")
    a("v_readfirstlane_b32 s3, v1")
    a("s_mov_b32 s26, s3")
    a("s_and_b32 s4, s2, 7")
    a("s_lshr_b32 s5, s2, 3")
    a("s_lshr_b32 s6, s5, 3")
    a("s_and_b32 s7, s5, 7")
    a("s_lshr_b32 s8, s4, 1")
    a("s_lshl_b32 s8, s8, 2")
    a("s_add_u32 s8, s8, s6")
    a("s_and_b32 s9, s4, 1")
    a("s_lshl_b32 s9, s9, 3")
    a("s_add_u32 s9, s9, s7")
    a("s_lshl_b32 s10, s4, 2")
    a("s_add_u32 s10, s10, s6")
    a("s_mov_b32 s28, 0x%x" % LOG2E)
    a("s_mov_b32 s29, 0x%x" % NLOG2E)
    a("s_waitcnt lgkmcnt(0)")
    srd(a, R_X, P_X, 2048 * 1024)
    srd(a, R_W, P_W, 512 * 3072)
    srd(a, R_XB, P_XB, 2048 * 1024)
    srd(a, R_DR, P_DR, 512 * 1024)
    srd(a, R_DI, P_DI, 512 * 1024)
    srd(a, R_WS, P_WS, WS_SIZE)
    srd(a, R_CR, P_CR, 2048 * 4096)
    srd(a, R_CI, P_CI, 2048 * 4096)
    srd(a, R_WP, P_WP, 32 * 512)
    srd(a, R_WO, P_WO, 512 * 1024)
    a("s_cmp_ge_u32 s3, 4")
    a("s_cbranch_scc1 K1_HELPER")
    S_RT, S_HP, S_S2, S_J = 8, 9, 10, 7

    vm = VMQ()
    st = Stamper(a, 250, 0)
    st()
    dbgst(a, 0, inv=True)
    dbgst(a, 5)
    LANE = 0
    XA = 2
    WQ = 14
    WV = 17
    A1, A2 = 20, 24
    I0, I1 = 28, 32
    VI = 36
    VF = 37
    VZ = 38
    ACQ, ACK, ACV = 40, 56, 72
    FR = 88
    T = 152
    a("s_getpc_b64 s[12:13]")
    a("v_lshlrev_b32 v%d, 6, v0" % T)
    NPF = 6
    for i in range(NPF):
        a("global_load_dword v%d, v%d, s[12:13] offset:0" % (T + 1 + i, T))
        if i != NPF - 1:
            a("v_add_u32 v%d, 0x1000, v%d" % (T, T))
    vm.issue("pf", NPF)
    a("s_or_b32 s14, s%d, s3" % S_RT)
    a("v_mov_b32 v%d, 0" % VZ)
    a("s_lshl_b32 s15, s%d, 3" % S_HP)
    if DBGST:
        a("s_add_u32 s15, s15, 128")
    a("s_add_u32 s16, s%d, s15" % P_DBG)
    a("s_addc_u32 s17, s%d, 0" % (P_DBG + 1))
    a("s_cmp_lg_u32 s14, 0")
    a("s_cbranch_scc1 K1_NOCLAIM")
    a("v_mov_b32 v%d, 1" % (T + 10))
    a("s_mov_b64 exec, 1")
    a("global_atomic_add v%d, v%d, v%d, s[16:17] sc0" % (T + 11, VZ, T + 10))
    a("s_mov_b64 exec, -1")
    a.label("K1_NOCLAIM")
    WF = T + 12
    wphi_frags(a, vm, LANE, WF, A1, A2, T + 20, S_HP)
    a("v_mov_b32 v%d, v%d" % (VI, T + 20))
    NT = 0
    if OPT["touch"]:
        NT = touches(a, T + 40)
        vm.issue("touch", NT)
    t0, t1, t2 = T + 24, T + 25, T + 26
    a("v_lshrrev_b32 v%d, 5, v0" % t0)
    a("s_lshl_b32 s18, s3, 5")
    a("v_add_u32 v%d, s18, v%d" % (t1, VI))
    a("v_lshrrev_b32 v%d, 1, v%d" % (t2, t1))
    a("v_and_b32 v%d, 7, v%d" % (t2, t2))
    a("v_xor_b32 v%d, v%d, v%d" % (t2, t2, t0))
    a("v_lshlrev_b32 v%d, 4, v%d" % (t2, t2))
    a("v_lshl_or_b32 v%d, v%d, 7, v%d" % (XA, t1, t2))
    for k in range(1, 4):
        a("v_xor_b32 v%d, 0x%x, v%d" % (XA + k, 32 * k, XA))
    for g in range(1, 3):
        for k in range(4):
            a("v_add_u32 v%d, 0x%x, v%d" % (XA + 4 * g + k, 65536 * g, XA + k))
    a("v_lshrrev_b32 v%d, 2, v0" % t1)
    a("v_and_b32 v%d, 3, v%d" % (t1, t1))
    a("v_lshl_or_b32 v%d, v%d, 3, v%d" % (t1, t0, t1))
    a("v_lshlrev_b32 v%d, 6, v%d" % (t1, t1))
    a("v_and_b32 v%d, 16, v0" % t2)
    a("v_lshl_or_b32 v%d, v%d, 1, v%d" % (t1, t2, t1))
    a("v_and_b32 v%d, 3, v0" % t2)
    a("v_lshl_or_b32 v%d, v%d, 3, v%d" % (WV, t2, t1))
    a("v_and_b32 v%d, 1, v0" % t2)
    a("v_lshl_or_b32 v%d, v%d, 4, v%d" % (WQ, t2, t1))
    a("v_and_b32 v%d, 2, v0" % t2)
    a("v_lshl_or_b32 v%d, v%d, 2, v%d" % (WQ, t2, WQ))
    for g in range(1, 3):
        a("v_add_u32 v%d, 0x%x, v%d" % (WQ + g, 65536 * g, WQ))
        a("v_add_u32 v%d, 0x%x, v%d" % (WV + g, 65536 * g, WV))
    a("v_lshlrev_b32 v%d, 3, v%d" % (t1, t0))
    a("v_sub_u32 v%d, v%d, v%d" % (t1, VI, t1))
    for ks, I in ((0, I0), (1, I1)):
        if ks:
            a("v_subrev_u32 v%d, 16, v%d" % (t1, t1))
        a("v_and_b32 v%d, 1, v%d" % (t2, t1))
        a("v_lshlrev_b32 v%d, 4, v%d" % (t2, t2))
        a("v_mov_b32 v%d, 0x3f80" % t0)
        a("v_lshlrev_b32 v%d, v%d, v%d" % (t2, t2, t0))
        a("v_ashrrev_i32 v%d, 1, v%d" % (t0, t1))
        for d in range(4):
            a("v_cmp_eq_u32 vcc, %d, v%d" % (d, t0))
            a("v_cndmask_b32 v%d, 0, v%d, vcc" % (I + d, t2))
    for r in range(48):
        a("v_mov_b32 v%d, 0" % (ACQ + r))

    def reads(g):
        c, k = g >> 2, g & 3
        slot = c % 5
        grp, off = slot >> 1, (slot & 1) * SLOT
        b = FR + (g & 3) * 16
        a("ds_read_b128 v[%d:%d], v%d offset:%d" % (b, b + 3, XA + 4 * grp + k, off))
        for p in range(3):
            areg = (WQ if p < 2 else WV) + grp
            for hf in range(2):
                o = off + 16384 + p * 4096 + (16 * k + 4 * hf) * 64
                d = b + 4 + p * 4 + hf * 2
                a("ds_read_b64_tr_b16 v[%d:%d], v%d offset:%d" % (d, d + 1, areg, o))

    def mfmas(g):
        b = FR + (g & 3) * 16
        a("v_mfma_f32_32x32x16_bf16 v[%d:%d], v[%d:%d], v[%d:%d], v[%d:%d]" % (ACQ, ACQ + 15, b + 4, b + 7, b, b + 3, ACQ, ACQ + 15))
        a("v_mfma_f32_32x32x16_bf16 v[%d:%d], v[%d:%d], v[%d:%d], v[%d:%d]" % (ACK, ACK + 15, b + 8, b + 11, b, b + 3, ACK, ACK + 15))
        a("v_mfma_f32_32x32x16_bf16 v[%d:%d], v[%d:%d], v[%d:%d], v[%d:%d]" % (ACV, ACV + 15, b, b + 3, b + 12, b + 15, ACV, ACV + 15))

    st()
    a("s_barrier")
    st()
    dbgst(a, 1)
    for g in range(3):
        reads(g)
    for g in range(32):
        issued_after = min(31, g + 2) - g
        a("s_waitcnt lgkmcnt(%d)" % (7 * issued_after))
        mfmas(g)
        if g + 3 < 32:
            if (g + 3) % 4 == 0:
                a("s_waitcnt lgkmcnt(0)")
                a("s_barrier")
            reads(g + 3)
        if g == 2:
            a("s_waitcnt vmcnt(%d)" % NT)
            wphi_finish(a, WF, A1, A2, VI)
        if g == 6:
            a("s_cmp_lg_u32 s14, 0")
            a("s_cbranch_scc1 K1_NOZERO")
            a("v_readfirstlane_b32 s19, v%d" % (T + 11))
            a("s_mov_b32 s20, 1")
            a("s_cmp_lg_u32 s19, 0")
            a("s_cbranch_scc1 K1_NOZERO")
            a("s_mov_b32 s20, 0")
            zero_kv(a, T + 30, VZ, S_HP)
            a.label("K1_NOZERO")
        if g == 14:
            a("s_cmp_lg_u32 s14, 0")
            a("s_cbranch_scc1 K1_NOFLAG")
            a("s_cmp_lg_u32 s20, 0")
            a("s_cbranch_scc1 K1_NOFLAG")
            a("s_waitcnt vmcnt(0)")
            a("v_mov_b32 v%d, 1" % (T + 10))
            a("s_mov_b64 exec, 1")
            a("global_atomic_add v%d, v%d, s[16:17] offset:4" % (VZ, T + 10))
            a("s_mov_b64 exec, -1")
            a.label("K1_NOFLAG")
        if g == 16 and OPT["wotouch"]:
            wotouch(a, T + 40)
        if g == 28:
            a("global_load_dword v%d, v%d, s[16:17] offset:4 sc1" % (VF, VZ))

    st()
    QF = FR
    KF = FR + 8
    VFm = FR + 16
    DP = FR + 32
    PH = FR + 48
    slot2 = 2 * SLOT
    for d in range(8):
        a("v_cvt_pk_bf16_f32 v%d, v%d, v%d" % (QF + d, ACQ + 2 * d, ACQ + 2 * d + 1))
    a("s_lshl_b32 s18, s3, 12")
    a("s_add_u32 s18, s18, 0x%x" % slot2)
    a("v_lshlrev_b32 v%d, 4, v0" % T)
    a("v_add_u32 v%d, s18, v%d" % (T, T))
    a("ds_write_b128 v%d, v[%d:%d]" % (T, QF, QF + 3))
    a("ds_write_b128 v%d, v[%d:%d] offset:1024" % (T, QF + 4, QF + 7))
    for d in range(8):
        a("v_cvt_pk_bf16_f32 v%d, v%d, v%d" % (KF + d, ACK + 2 * d, ACK + 2 * d + 1))
    a("s_waitcnt lgkmcnt(0)")
    a("s_barrier")
    st()
    dbgst(a, 2)
    a("v_mfma_f32_32x32x16_bf16 v[%d:%d], v[%d:%d], v[%d:%d], 0" % (DP, DP + 15, A1, A1 + 3, KF, KF + 3))
    a("v_mfma_f32_32x32x16_bf16 v[%d:%d], v[%d:%d], v[%d:%d], v[%d:%d]" % (DP, DP + 15, A2, A2 + 3, KF + 4, KF + 7, DP, DP + 15))
    for d in range(8):
        a("v_cvt_pk_bf16_f32 v%d, v%d, v%d" % (VFm + d, ACV + 2 * d, ACV + 2 * d + 1))
    AV0, AV1 = ACQ, ACQ + 8
    a("v_cmp_gt_u32 vcc, 16, v%d" % VI)
    a("v_mov_b32 v%d, 0x3f803f80" % (T + 1))
    for d in range(8):
        a("v_cndmask_b32 v%d, v%d, v%d, vcc" % (AV0 + d, T + 1, VFm + d))
        a("v_cndmask_b32 v%d, v%d, v%d, vcc" % (AV1 + d, VFm + d, T + 1))
    softmax_units(a, DP, T + 2, PH)
    st()
    for hd, D in ((0, ACK), (1, ACV)):
        p = PH + 8 * hd
        a("v_mfma_f32_32x32x16_bf16 v[%d:%d], v[%d:%d], v[%d:%d], 0" % (D, D + 15, p, p + 3, I0, I0 + 3))
        a("v_mfma_f32_32x32x16_bf16 v[%d:%d], v[%d:%d], v[%d:%d], v[%d:%d]" % (D, D + 15, p + 4, p + 7, I1, I1 + 3, D, D + 15))
    BK = FR
    for hd, D in ((0, ACK), (1, ACV)):
        for d in range(8):
            a("v_cvt_pk_bf16_f32 v%d, v%d, v%d" % (BK + 8 * hd + d, D + 2 * d, D + 2 * d + 1))
    KV0, KV1 = FR + 16, FR + 32
    for hd, D, AV in ((0, KV0, AV0), (1, KV1, AV1)):
        b = BK + 8 * hd
        a("v_mfma_f32_32x32x16_bf16 v[%d:%d], v[%d:%d], v[%d:%d], 0" % (D, D + 15, AV, AV + 3, b, b + 3))
        a("v_mfma_f32_32x32x16_bf16 v[%d:%d], v[%d:%d], v[%d:%d], v[%d:%d]" % (D, D + 15, AV + 4, AV + 7, b + 4, b + 7, D, D + 15))
    a("s_lshl_b32 s18, s3, 12")
    a("s_add_u32 s18, s18, 0x%x" % (slot2 + 16384))
    a("v_lshlrev_b32 v%d, 4, v0" % T)
    a("v_add_u32 v%d, s18, v%d" % (T + 1, T))
    a("ds_write_b128 v%d, v[%d:%d]" % (T + 1, KV0, KV0 + 3))
    a("ds_write_b128 v%d, v[%d:%d] offset:1024" % (T + 1, KV0 + 4, KV0 + 7))
    a("ds_write_b128 v%d, v[%d:%d] offset:2048" % (T + 1, KV1 + 8, KV1 + 11))
    a("ds_write_b128 v%d, v[%d:%d] offset:3072" % (T + 1, KV1 + 12, KV1 + 15))
    a("v_cmp_gt_u32 vcc, 32, v0")
    a("v_cndmask_b32 v%d, v%d, v%d, vcc" % (T + 2, KV1, KV0 + 8))
    a("s_lshl_b32 s18, s3, 12")
    a("s_add_u32 s18, s18, 0x%x" % (slot2 + 2048))
    a("v_lshlrev_b32 v%d, 2, v0" % (T + 3))
    a("v_add_u32 v%d, s18, v%d" % (T + 4, T + 3))
    a("ds_write_b32 v%d, v%d" % (T + 4, T + 2))
    a("s_waitcnt lgkmcnt(0)")
    st()
    a("s_barrier")
    st()
    a("s_lshl_b32 s18, s3, 10")
    a("s_add_u32 s18, s18, 0x%x" % (slot2 + 16384))
    a("v_add_u32 v%d, s18, v%d" % (T + 1, T))
    RB = FR
    for ww in range(4):
        a("ds_read_b128 v[%d:%d], v%d offset:%d" % (RB + 4 * ww, RB + 4 * ww + 3, T + 1, 4096 * ww))
    a("v_add_u32 v%d, 0x%x, v%d" % (T + 4, slot2 + 2048, T + 3))
    for ww in range(4):
        a("ds_read_b32 v%d, v%d offset:%d" % (RB + 16 + ww, T + 4, 4096 * ww))
    a("s_mov_b32 s21, 0")
    a.label("K1_POLL")
    a("s_waitcnt vmcnt(0)")
    a("v_readfirstlane_b32 s19, v%d" % VF)
    a("s_cmp_lg_u32 s19, 0")
    a("s_cbranch_scc1 K1_POLLDONE")
    a("s_add_u32 s21, s21, 1")
    a("s_cmp_lg_u32 s21, 4000")
    a("s_cbranch_scc1 K1_POLLMORE")
    a("v_mov_b32 v%d, 1" % (T + 10))
    a("s_mov_b64 exec, 1")
    a("global_atomic_add v%d, v%d, v%d, s[16:17] sc0" % (T + 11, VZ, T + 10))
    a("s_waitcnt vmcnt(0)")
    a("s_mov_b64 exec, -1")
    a("v_readfirstlane_b32 s19, v%d" % (T + 11))
    a("s_cmp_lg_u32 s19, 0")
    a("s_cbranch_scc1 K1_POLLMORE")
    zero_kv(a, T + 30, VZ, S_HP)
    a("s_waitcnt vmcnt(0)")
    a("s_mov_b64 exec, 1")
    a("global_atomic_add v%d, v%d, s[16:17] offset:4" % (VZ, T + 10))
    a("s_mov_b64 exec, -1")
    a.label("K1_POLLMORE")
    a("s_sleep 8")
    a("global_load_dword v%d, v%d, s[16:17] offset:4 sc1" % (VF, VZ))
    a("s_branch K1_POLL")
    a.label("K1_POLLDONE")
    st()
    a("s_waitcnt lgkmcnt(0)")
    for i in range(4):
        a("v_add_f32 v%d, v%d, v%d" % (RB + i, RB + i, RB + 4 + i))
        a("v_add_f32 v%d, v%d, v%d" % (RB + 8 + i, RB + 8 + i, RB + 12 + i))
    a("v_add_f32 v%d, v%d, v%d" % (RB + 16, RB + 16, RB + 17))
    a("v_add_f32 v%d, v%d, v%d" % (RB + 18, RB + 18, RB + 19))
    for i in range(4):
        a("v_add_f32 v%d, v%d, v%d" % (RB + i, RB + i, RB + 8 + i))
    a("v_add_f32 v%d, v%d, v%d" % (RB + 16, RB + 16, RB + 18))
    a("s_lshl_b32 s18, s%d, 12" % S_HP)
    a("s_lshl_b32 s19, s3, 10")
    a("s_add_u32 s18, s18, s19")
    for i in range(4):
        a("buffer_atomic_add_f32 v%d, v%d, s[%d:%d], s18 offen offset:%d" % (RB + i, T + 3, R_WS, R_WS + 3, 256 * i))
    a("s_cmp_lg_u32 s3, 0")
    a("s_cbranch_scc1 K1_CEND")
    a("s_lshl_b32 s18, s%d, 8" % S_HP)
    a("s_add_u32 s18, s18, 0x%x" % WS_Z)
    a("buffer_atomic_add_f32 v%d, v%d, s[%d:%d], s18 offen" % (RB + 16, T + 3, R_WS, R_WS + 3))
    a.label("K1_CEND")
    dbgst(a, 3)
    if STAMP:
        st()
        a("s_waitcnt vmcnt(0)")
        st()
        st.flush(26, T)
    a("s_endpgm")

    a.label("K1_HELPER")
    vm = VMQ()
    st = Stamper(a, 250, 0)
    st()
    a("s_sub_u32 s3, s3, 4")
    VX, VW, VB, VD = 1, 2, 3, 4
    t0, t1, t2 = 10, 11, 12
    a("s_and_b32 s18, s3, 1")
    a("s_lshl_b32 s18, s18, 2")
    a("v_lshrrev_b32 v%d, 4, v0" % t0)
    a("v_add_u32 v%d, s18, v%d" % (t1, t0))
    a("v_and_b32 v%d, 7, v%d" % (t1, t1))
    a("v_and_b32 v%d, 7, v0" % t2)
    a("v_xor_b32 v%d, v%d, v%d" % (t1, t1, t2))
    a("v_lshlrev_b32 v%d, 4, v%d" % (t1, t1))
    a("v_lshrrev_b32 v%d, 3, v0" % t2)
    a("v_lshl_or_b32 v%d, v%d, 10, v%d" % (VX, t2, t1))
    a("v_lshrrev_b32 v%d, 2, v0" % t1)
    a("v_mul_u32_u24 v%d, 0xc00, v%d" % (t1, t1))
    a("v_and_b32 v%d, 3, v0" % t2)
    a("v_lshl_or_b32 v%d, v%d, 4, v%d" % (VW, t2, t1))
    a("s_lshl_b32 s12, s%d, 17" % S_RT)
    a("s_lshl_b32 s18, s3, 13")
    a("s_add_u32 s12, s12, s18")
    a("s_mul_i32 s13, s3, 0xc000")
    a("s_lshl_b32 s18, s%d, 6" % S_HP)
    a("s_add_u32 s13, s13, s18")
    a("s_lshl_b32 s14, s3, 10")

    def stageA(c):
        slot = (c % 5) * SLOT
        if OPT["rot"]:
            a("s_add_u32 s22, s%d, %d" % (S_J, c))
            a("s_and_b32 s22, s22, 7")
        else:
            a("s_mov_b32 s22, %d" % c)
        a("s_lshl_b32 s23, s22, 7")
        a("s_add_u32 s23, s23, s12")
        a("s_mul_i32 s24, s22, 0x30000")
        a("s_add_u32 s24, s24, s13")
        for m in range(4):
            a("s_add_u32 m0, s14, 0x%x" % (slot + m * 4096))
            a("s_add_u32 s18, s23, 0x%x" % (m * 32768))
            a("buffer_load_dwordx4 v%d, s[%d:%d], s18 offen lds" % (VX, R_X, R_X + 3))
        for p in range(3):
            a("s_add_u32 m0, s14, 0x%x" % (slot + 16384 + p * 4096))
            a("s_add_u32 s18, s24, 0x%x" % (p * 1024))
            a("buffer_load_dwordx4 v%d, s[%d:%d], s18 offen lds" % (VW, R_W, R_W + 3))
        vm.issue(("c", c), 7)

    uid = [0]

    def stageB(c):
        cb = c - 8
        slot = (c % 5) * SLOT
        if OPT["rot"]:
            a("s_add_u32 s22, s%d, %d" % (S_J, cb))
            a("s_and_b32 s22, s22, 3")
            a("s_lshl_b32 s22, s22, 8")
        else:
            a("s_mov_b32 s22, %d" % (cb << 8))
        a("s_add_u32 s23, s15, s22")
        a("s_add_u32 s24, s16, s22")
        for m in range(4):
            a("s_add_u32 m0, s14, 0x%x" % (slot + m * 4096))
            a("s_add_u32 s18, s23, 0x%x" % (m * 512 * 1024))
            a("buffer_load_dwordx4 v%d, s[%d:%d], s18 offen lds" % (VB, R_XB, R_XB + 3))
        for m in range(4):
            a("s_add_u32 m0, s14, 0x%x" % (slot + 16384 + m * 4096))
            a("s_add_u32 s18, s24, 0x%x" % ((m & 1) * 16384))
            R = R_DR if m < 2 else R_DI
            if m == 2:
                uid[0] += 1
                L1, L2 = "K1_SP%d" % uid[0], "K1_SPE%d" % uid[0]
                a("s_cmp_eq_u32 s17, 0")
                a("s_cbranch_scc1 %s" % L1)
                a("buffer_load_dwordx4 v%d, s[%d:%d], s18 offen lds" % (VD, R, R + 3))
                a("s_branch %s" % L2)
                a.label(L1)
                a("s_mov_b64 exec, 0xffff")
                a("s_add_u32 s19, s22, 0x%x" % (256 * 1024))
                a("buffer_load_dwordx4 v%d, s[%d:%d], s19 offen lds" % (VD, R_DR, R_DR + 3))
                a("s_not_b64 exec, exec")
                a("buffer_load_dwordx4 v%d, s[%d:%d], s18 offen lds" % (VD, R, R + 3))
                a("s_mov_b64 exec, -1")
                a.label(L2)
            else:
                a("buffer_load_dwordx4 v%d, s[%d:%d], s18 offen lds" % (VD, R, R + 3))
        vm.issue(("c", c), 8)

    for c in range(2):
        stageA(c)
    a("s_lshl_b32 s18, s3, 2")
    a("v_add_u32 v%d, s18, v%d" % (t1, t0))
    a("v_and_b32 v%d, 15, v0" % t2)
    a("v_xor_b32 v%d, v%d, v%d" % (t1, t1, t2))
    a("v_lshlrev_b32 v%d, 4, v%d" % (t1, t1))
    a("v_lshl_or_b32 v%d, v%d, 15, v%d" % (VB, t0, t1))
    a("v_lshl_or_b32 v%d, v%d, 10, v%d" % (VD, t0, t1))
    a("s_lshl_b32 s15, s3, 7")
    a("s_add_u32 s15, s15, s%d" % S_S2)
    a("s_lshl_b32 s15, s15, 10")
    a("s_lshl_b32 s16, s%d, 5" % S_J)
    a("s_lshl_b32 s18, s3, 2")
    a("s_add_u32 s16, s16, s18")
    a("s_lshl_b32 s16, s16, 10")
    a("s_or_b32 s17, s%d, s3" % S_J)
    for c in range(2, 5):
        stageA(c)
    A1, A2 = 20, 24
    WF = 28
    VI = 36
    FF = 40
    wphi_frags(a, vm, 0, WF, A1, A2, 60, S_HP)
    a("v_mov_b32 v%d, v60" % VI)
    a("s_lshr_b32 s18, s3, 1")
    a("s_lshl_b32 s18, s18, 5")
    a("v_add_u32 v%d, s18, v%d" % (t1, VI))
    a("v_lshrrev_b32 v%d, 5, v0" % t2)
    a("v_lshlrev_b32 v%d, 4, v%d" % (t2, t2))
    a("v_lshl_or_b32 v%d, v%d, 17, v%d" % (13, t1, t2))
    a("v_subrev_u32 v%d, 32, v%d" % (14, t1))
    a("v_max_i32 v%d, 0, v%d" % (14, 14))
    a("v_lshl_or_b32 v%d, v%d, 17, v%d" % (14, 14, t2))
    a("v_mov_b32 v%d, v%d" % (15, t1))
    for kk in range(4):
        a("buffer_load_dwordx4 v[%d:%d], v13, s[%d:%d], 0 offen offset:%d" % (FF + 4 * kk, FF + 4 * kk + 3, R_CR, R_CR + 3, 32 * kk))
    for kk in range(4):
        a("buffer_load_dwordx4 v[%d:%d], v14, s[%d:%d], 0 offen offset:%d" % (FF + 16 + 4 * kk, FF + 16 + 4 * kk + 3, R_CI, R_CI + 3, 32 * kk))
    vm.issue("f", 8)

    st()
    for c in range(8):
        a("s_waitcnt vmcnt(%d)" % vm.wait_n(("c", c)))
        if c in (0, 1, 4, 7):
            st()
        a("s_barrier")
        if c >= 1:
            if c + 4 < 8:
                stageA(c + 4)
            else:
                stageB(c + 4)
    wphi_finish(a, WF, A1, A2, VI)
    a("v_cmp_lt_u32 vcc, 32, v15")
    for i in range(16):
        a("v_cndmask_b32 v%d, v%d, v%d, vcc" % (FF + i, FF + i, FF + 16 + i))
    BA, BB = 72, 80
    a("v_and_b32 v%d, 3, v%d" % (t1, VI))
    a("v_and_b32 v%d, 4, v%d" % (t2, VI))
    a("v_lshl_or_b32 v%d, v%d, 1, v%d" % (t1, t2, t1))
    a("v_and_b32 v%d, 8, v%d" % (t2, VI))
    a("v_lshrrev_b32 v%d, 1, v%d" % (t2, t2))
    a("v_or_b32 v%d, v%d, v%d" % (t1, t1, t2))
    a("v_and_b32 v%d, 16, v%d" % (t2, VI))
    a("v_or_b32 v%d, v%d, v%d" % (t1, t1, t2))
    a("v_lshrrev_b32 v%d, 5, v0" % t0)
    a("v_and_b32 v%d, 15, v%d" % (t2, t1))
    a("v_xor_b32 v%d, v%d, v%d" % (t2, t2, t0))
    a("v_lshlrev_b32 v%d, 4, v%d" % (t2, t2))
    a("v_lshl_or_b32 v%d, v%d, 8, v%d" % (t2, t1, t2))
    a("s_lshr_b32 s18, s3, 1")
    a("s_lshl_b32 s18, s18, 13")
    a("s_add_u32 s18, s18, 0x%x" % (3 * SLOT))
    a("v_add_u32 v%d, s18, v%d" % (BA, t2))
    a("s_and_b32 s18, s3, 1")
    a("s_lshl_b32 s18, s18, 13")
    a("s_add_u32 s18, s18, 0x%x" % (3 * SLOT + 16384))
    a("v_add_u32 v%d, s18, v%d" % (BB, t2))
    for k in range(1, 8):
        a("v_xor_b32 v%d, 0x%x, v%d" % (BA + k, 32 * k, BA))
        a("v_xor_b32 v%d, 0x%x, v%d" % (BB + k, 32 * k, BB))
    ACU = 96
    for r in range(16):
        a("v_mov_b32 v%d, 0" % (ACU + r))
    a("s_barrier")
    st()
    QF = 112
    DP = 120
    PH = 136
    T = 152
    a("s_lshl_b32 s18, s3, 12")
    a("s_add_u32 s18, s18, 0x%x" % (2 * SLOT))
    a("v_lshlrev_b32 v%d, 4, v0" % T)
    a("v_add_u32 v%d, s18, v%d" % (T + 1, T))
    a("ds_read_b128 v[%d:%d], v%d" % (QF, QF + 3, T + 1))
    a("ds_read_b128 v[%d:%d], v%d offset:1024" % (QF + 4, QF + 7, T + 1))
    a("s_waitcnt lgkmcnt(1)")
    a("v_mfma_f32_32x32x16_bf16 v[%d:%d], v[%d:%d], v[%d:%d], 0" % (DP, DP + 15, A1, A1 + 3, QF, QF + 3))
    a("s_waitcnt lgkmcnt(0)")
    a("v_mfma_f32_32x32x16_bf16 v[%d:%d], v[%d:%d], v[%d:%d], v[%d:%d]" % (DP, DP + 15, A2, A2 + 3, QF + 4, QF + 7, DP, DP + 15))
    softmax_units(a, DP, T + 2, PH)
    a("s_lshl_b32 s18, s%d, 2" % S_RT)
    a("s_add_u32 s18, s18, s3")
    a("s_lshl_b32 s18, s18, 16")
    a("s_lshl_b32 s19, s%d, 12" % S_HP)
    a("s_add_u32 s18, s18, s19")
    a("s_add_u32 s18, s18, 0x%x" % WS_PHI)
    for u in range(4):
        a("buffer_store_dwordx4 v[%d:%d], v%d, s[%d:%d], s18 offen offset:%d" % (PH + 4 * u, PH + 4 * u + 3, T, R_WS, R_WS + 3, 1024 * u))
    vm.issue("phi", 4)
    st()
    a("s_waitcnt vmcnt(%d)" % vm.wait_n(("c", 9)))
    st()
    a("s_barrier")
    st()
    BF = 160
    NB = 6
    DIST = 4

    def breads(gs):
        c = 8 + gs // 8
        k = gs % 8
        off = (SLOT if c in (9, 11) else 0)
        b = BF + (gs % NB) * 8
        a("ds_read_b128 v[%d:%d], v%d offset:%d" % (b, b + 3, BA + k, off))
        a("ds_read_b128 v[%d:%d], v%d offset:%d" % (b + 4, b + 7, BB + k, off))

    def bmf(gs):
        b = BF + (gs % NB) * 8
        a("v_mfma_f32_32x32x16_bf16 v[%d:%d], v[%d:%d], v[%d:%d], v[%d:%d]" % (ACU, ACU + 15, b, b + 3, b + 4, b + 7, ACU, ACU + 15))

    for half in range(2):
        g0 = 16 * half
        if half == 1:
            a("s_waitcnt vmcnt(%d)" % vm.wait_n(("c", 11)))
            st()
            a("s_barrier")
            st()
            for k in range(8):
                a("v_subrev_u32 v%d, 0x%x, v%d" % (BA + k, 3 * SLOT, BA + k))
                a("v_subrev_u32 v%d, 0x%x, v%d" % (BB + k, 3 * SLOT, BB + k))
        for g in range(g0, g0 + DIST):
            breads(g)
        for g in range(g0, g0 + 16):
            after = min(g0 + 15, g + DIST - 1) - g
            a("s_waitcnt lgkmcnt(%d)" % (2 * after))
            bmf(g)
            if g + DIST < g0 + 16:
                breads(g + DIST)
    st()
    UF = 112
    for d in range(8):
        a("v_cvt_pk_bf16_f32 v%d, v%d, v%d" % (UF + d, ACU + 2 * d, ACU + 2 * d + 1))
    a("s_lshl_b32 s18, s3, 11")
    a("s_add_u32 s18, s18, 0x%x" % (3 * SLOT))
    a("v_add_u32 v%d, s18, v%d" % (T + 1, T))
    a("ds_write_b128 v%d, v[%d:%d]" % (T + 1, UF, UF + 3))
    a("ds_write_b128 v%d, v[%d:%d] offset:1024" % (T + 1, UF + 4, UF + 7))
    a("s_xor_b32 s18, s3, 2")
    a("s_lshl_b32 s18, s18, 11")
    a("s_add_u32 s18, s18, 0x%x" % (3 * SLOT))
    a("v_add_u32 v%d, s18, v%d" % (T + 2, T))
    a("s_waitcnt lgkmcnt(0)")
    a("s_barrier")
    a("ds_read_b128 v[%d:%d], v%d" % (UF + 8, UF + 11, T + 2))
    a("ds_read_b128 v[%d:%d], v%d offset:1024" % (UF + 12, UF + 15, T + 2))
    DH = 120 + 16
    a("s_lshr_b32 s18, s3, 1")
    a("s_cmp_eq_u32 s18, 0")
    a("s_cbranch_scc1 K1_SA0")
    for i in range(8):
        a("v_swap_b32 v%d, v%d" % (FF + i, FF + 8 + i))
    a.label("K1_SA0")
    a("v_mfma_f32_32x32x16_bf16 v[%d:%d], v[%d:%d], v[%d:%d], 0" % (DH, DH + 15, UF, UF + 3, FF, FF + 3))
    a("v_mfma_f32_32x32x16_bf16 v[%d:%d], v[%d:%d], v[%d:%d], v[%d:%d]" % (DH, DH + 15, UF + 4, UF + 7, FF + 4, FF + 7, DH, DH + 15))
    a("s_waitcnt lgkmcnt(1)")
    a("v_mfma_f32_32x32x16_bf16 v[%d:%d], v[%d:%d], v[%d:%d], v[%d:%d]" % (DH, DH + 15, UF + 8, UF + 11, FF + 8, FF + 11, DH, DH + 15))
    a("s_waitcnt lgkmcnt(0)")
    a("v_mfma_f32_32x32x16_bf16 v[%d:%d], v[%d:%d], v[%d:%d], v[%d:%d]" % (DH, DH + 15, UF + 12, UF + 15, FF + 12, FF + 15, DH, DH + 15))
    HP = 112
    for d in range(8):
        a("v_cvt_pk_bf16_f32 v%d, v%d, v%d" % (HP + d, DH + 2 * d, DH + 2 * d + 1))
    a("v_lshrrev_b32 v%d, 5, v0" % t0)
    a("v_lshlrev_b32 v%d, 4, v%d" % (t0, t0))
    a("v_lshl_or_b32 v%d, v15, 10, v%d" % (t0, t0))
    a("s_lshl_b32 s18, s%d, 16" % S_S2)
    a("s_lshl_b32 s19, s%d, 7" % S_J)
    a("s_add_u32 s18, s18, s19")
    a("s_and_b32 s19, s3, 1")
    a("s_lshl_b32 s19, s19, 6")
    a("s_add_u32 s18, s18, s19")
    a("s_add_u32 s18, s18, 0x%x" % WS_H)
    a("buffer_store_dwordx4 v[%d:%d], v%d, s[%d:%d], s18 offen" % (HP, HP + 3, t0, R_WS, R_WS + 3))
    a("buffer_store_dwordx4 v[%d:%d], v%d, s[%d:%d], s18 offen offset:32" % (HP + 4, HP + 7, t0, R_WS, R_WS + 3))
    dbgst(a, 4)
    if STAMP:
        st()
        a("s_waitcnt vmcnt(0)")
        st()
        st.flush(26, t0)
    a.label("K1_END")
    a("s_endpgm")


def zero_kv(a, TT, VZ, S_HP):
    base = (TT + 3) & ~3
    for i in range(4):
        a("v_mov_b32 v%d, 0" % (base + i))
    a("v_lshlrev_b32 v%d, 4, v0" % (base + 4))
    a("s_lshl_b32 s18, s%d, 12" % S_HP)
    for i in range(4):
        a("buffer_store_dwordx4 v[%d:%d], v%d, s[%d:%d], s18 offen offset:%d sc1" % (base, base + 3, base + 4, R_WS, R_WS + 3, 1024 * i))
    a("s_lshl_b32 s18, s%d, 8" % S_HP)
    a("s_add_u32 s18, s18, 0x%x" % WS_Z)
    a("s_mov_b64 exec, 0xffff")
    a("buffer_store_dwordx4 v[%d:%d], v%d, s[%d:%d], s18 offen sc1" % (base, base + 3, base + 4, R_WS, R_WS + 3))
    a("s_mov_b64 exec, -1")


def kd(name, vgpr):
    return """.p2align 6
.amdhsa_kernel %s
  .amdhsa_next_free_vgpr %d
  .amdhsa_next_free_sgpr 102
  .amdhsa_accum_offset %d
  .amdhsa_group_segment_fixed_size 0
  .amdhsa_kernarg_size 96
  .amdhsa_user_sgpr_count 2
  .amdhsa_user_sgpr_kernarg_segment_ptr 1
  .amdhsa_system_sgpr_workgroup_id_x 1
.end_amdhsa_kernel
""" % (name, vgpr, vgpr)


def main():
    out = sys.argv[1] if len(sys.argv) > 1 else "cdna_kernels/%s.s" % NAME
    only1 = "--k1" in sys.argv
    global STAMP
    if "--dbgst" in sys.argv:
        import gen
        gen.DBGST = True
        globals()["DBGST"] = True
    for arg in sys.argv:
        if arg.startswith("--opt="):
            import gen
            for kv in arg[6:].split(","):
                k_, v_ = kv.split("=")
                gen.OPT[k_] = int(v_)
                OPT[k_] = int(v_)
    if "--stamp" in sys.argv:
        STAMP = True
        import gen
        gen.STAMP = True
    hdr = open("cdna_kernels/%s.s.ref" % NAME).read().split("; Override launch geometry")[0]
    s = hdr
    s += "; @launch kernel=k1_kernel grid=(256,1,1) block=(512,1,1) lds=163840\n"
    if not only1:
        s += "; @launch kernel=k2_kernel grid=(256,1,1) block=(512,1,1) lds=163840\n"
    s += '.amdgcn_target "amdgcn-amd-amdhsa--gfx950"\n.text\n'
    a = Asm()
    gen_k1(a)
    s += a.text()
    if not only1:
        from gen2 import gen_k2
        b = Asm()
        gen_k2(b)
        s += b.text()
    s += '.section .rodata,"a"\n'
    s += kd("k1_kernel", 256)
    if not only1:
        s += kd("k2_kernel", 256)
    open(out, "w").write(s)
    print("wrote", out, len(s), "bytes; k1 instrs", a.ninstr)


if __name__ == "__main__":
    main()
```

```python
from gen import *
import gen


def gen_k1(a):
    OPT = gen.OPT
    K = "k1_kernel"
    a.raw(".globl %s\n.p2align 8\n.type %s,@function\n%s:" % (K, K, K))
    a("s_cmp_ge_u32 s2, 256")
    a("s_cbranch_scc1 K1_END")
    load_ptrs(a)
    a("s_getpc_b64 s[12:13]")
    a.raw("K1_PC:")
    a("v_lshlrev_b32 v2, 7, v0")
    a("v_cmp_gt_u32 vcc, K_TEXT_END-K1_PC, v2")
    a("s_and_saveexec_b64 s[14:15], vcc")
    a("s_cbranch_execz K1_NOPF")
    a("global_load_dword v254, v2, s[12:13]")
    a.label("K1_NOPF")
    a("s_mov_b64 exec, -1")
    a("v_lshrrev_b32 v1, 6, v0")
    a("v_and_b32 v0, 63, v0")
    a("v_readfirstlane_b32 s3, v1")
    a("s_and_b32 s4, s2, 7")
    a("s_lshr_b32 s5, s2, 3")
    a("s_lshr_b32 s6, s5, 3")
    a("s_and_b32 s7, s5, 7")
    a("s_lshr_b32 s8, s4, 1")
    a("s_lshl_b32 s8, s8, 2")
    a("s_add_u32 s8, s8, s6")
    a("s_and_b32 s9, s4, 1")
    a("s_lshl_b32 s9, s9, 3")
    a("s_add_u32 s9, s9, s7")
    a("s_lshl_b32 s10, s4, 2")
    a("s_add_u32 s10, s10, s6")
    a("s_mov_b32 s26, s3")
    a("s_cmp_lt_u32 s3, 4")
    a("s_cbranch_scc1 K1_COMPUTE")
    S_RT, S_HP, S_S2, S_J = 8, 9, 10, 7

    def srd_const(d, nbytes):
        a("s_mov_b32 s%d, 0x%x" % (d + 2, nbytes))
        a("s_mov_b32 s%d, 0x00020000" % (d + 3))

    def srd_base(d, lo):
        a("s_mov_b32 s%d, s%d" % (d, lo))
        a("s_mov_b32 s%d, s%d" % (d + 1, lo + 1))

    vm = VMQ()
    st = Stamper(a, 250, 0)
    a("s_sub_u32 s3, s3, 4")
    VX, VW, VB, VD = 1, 2, 3, 4
    t0, t1, t2 = 10, 11, 12
    a("s_and_b32 s18, s3, 1")
    a("s_lshl_b32 s18, s18, 2")
    a("v_lshrrev_b32 v%d, 4, v0" % t0)
    a("v_add_u32 v%d, s18, v%d" % (t1, t0))
    a("v_and_b32 v%d, 7, v0" % t2)
    a("v_xor_b32 v%d, v%d, v%d" % (t1, t1, t2))
    a("v_lshlrev_b32 v%d, 4, v%d" % (t1, t1))
    a("v_lshrrev_b32 v%d, 3, v0" % t2)
    a("v_lshl_or_b32 v%d, v%d, 10, v%d" % (VX, t2, t1))
    a("v_lshrrev_b32 v%d, 2, v0" % t1)
    a("v_mul_u32_u24 v%d, 0xc00, v%d" % (t1, t1))
    a("v_and_b32 v%d, 3, v0" % t2)
    a("v_lshl_or_b32 v%d, v%d, 4, v%d" % (VW, t2, t1))
    a("s_lshl_b32 s12, s%d, 17" % S_RT)
    a("s_lshl_b32 s18, s3, 13")
    a("s_add_u32 s12, s12, s18")
    a("s_mul_i32 s13, s3, 0xc000")
    a("s_lshl_b32 s18, s%d, 6" % S_HP)
    a("s_add_u32 s13, s13, s18")
    a("s_lshl_b32 s14, s3, 10")
    srd_const(R_X, 2048 * 1024)
    srd_const(R_W, 512 * 3072)
    a("s_waitcnt lgkmcnt(0)")
    srd_base(R_X, P_X)
    srd_base(R_W, P_W)
    st()

    def stageA(c):
        slot = (c % 5) * SLOT
        for m in range(4):
            a("s_add_u32 m0, s14, 0x%x" % (slot + m * 4096))
            a("s_add_u32 s18, s12, 0x%x" % (c * 128 + m * 32768))
            a("buffer_load_dwordx4 v%d, s[%d:%d], s18 offen lds" % (VX, R_X, R_X + 3))
        for p in range(3):
            a("s_add_u32 m0, s14, 0x%x" % (slot + 16384 + p * 4096))
            a("s_add_u32 s18, s13, 0x%x" % (c * 0x30000 + p * 1024))
            a("buffer_load_dwordx4 v%d, s[%d:%d], s18 offen lds" % (VW, R_W, R_W + 3))
        vm.issue(("c", c), 7)

    uid = [0]

    def stageB(c):
        cb = c - 8
        slot = (c % 5) * SLOT
        for m in range(4):
            a("s_add_u32 m0, s14, 0x%x" % (slot + m * 4096))
            a("s_add_u32 s18, s15, 0x%x" % (cb * 256 + m * 512 * 1024))
            a("buffer_load_dwordx4 v%d, s[%d:%d], s18 offen lds" % (VB, R_XB, R_XB + 3))
        for m in range(4):
            a("s_add_u32 m0, s14, 0x%x" % (slot + 16384 + m * 4096))
            a("s_add_u32 s18, s16, 0x%x" % (cb * 256 + (m & 1) * 16384))
            R = R_DR if m < 2 else R_DI
            if m == 2:
                uid[0] += 1
                L1, L2 = "K1_SP%d" % uid[0], "K1_SPE%d" % uid[0]
                a("s_cmp_eq_u32 s17, 0")
                a("s_cbranch_scc1 %s" % L1)
                a("buffer_load_dwordx4 v%d, s[%d:%d], s18 offen lds" % (VD, R, R + 3))
                a("s_branch %s" % L2)
                a.label(L1)
                a("s_mov_b64 exec, 0xffff")
                a("s_mov_b32 s19, 0x%x" % (cb * 256 + 256 * 1024))
                a("buffer_load_dwordx4 v%d, s[%d:%d], s19 offen lds" % (VD, R_DR, R_DR + 3))
                a("s_not_b64 exec, exec")
                a("buffer_load_dwordx4 v%d, s[%d:%d], s18 offen lds" % (VD, R, R + 3))
                a("s_mov_b64 exec, -1")
                a.label(L2)
            else:
                a("buffer_load_dwordx4 v%d, s[%d:%d], s18 offen lds" % (VD, R, R + 3))
        vm.issue(("c", c), 8)

    def stage(c):
        if c < 8:
            stageA(c)
        elif c < 12:
            stageB(c)

    LA = OPT["la"]
    stage(0)
    st()
    stage(1)
    st()
    srd(a, R_XB, P_XB, 2048 * 1024)
    srd(a, R_DR, P_DR, 512 * 1024)
    srd(a, R_DI, P_DI, 512 * 1024)
    srd(a, R_WS, P_WS, WS_SIZE)
    srd(a, R_CR, P_CR, 2048 * 4096)
    srd(a, R_CI, P_CI, 2048 * 4096)
    a("s_lshl_b32 s18, s3, 2")
    a("v_add_u32 v%d, s18, v%d" % (t1, t0))
    a("v_and_b32 v%d, 15, v0" % t2)
    a("v_xor_b32 v%d, v%d, v%d" % (t1, t1, t2))
    a("v_lshlrev_b32 v%d, 4, v%d" % (t1, t1))
    a("v_lshl_or_b32 v%d, v%d, 15, v%d" % (VB, t0, t1))
    a("v_lshl_or_b32 v%d, v%d, 10, v%d" % (VD, t0, t1))
    a("s_lshl_b32 s15, s3, 7")
    a("s_add_u32 s15, s15, s%d" % S_S2)
    a("s_lshl_b32 s15, s15, 10")
    a("s_lshl_b32 s16, s%d, 5" % S_J)
    a("s_lshl_b32 s18, s3, 2")
    a("s_add_u32 s16, s16, s18")
    a("s_lshl_b32 s16, s16, 10")
    a("s_or_b32 s17, s%d, s3" % S_J)
    for c in range(2, LA + 1):
        stage(c)
        st()
    VI = 36
    FF = 40
    BA, BB = 72, 80
    ACU = 96

    def late_setup():
        a("v_and_b32 v%d, 31, v0" % VI)
        a("s_lshr_b32 s18, s3, 1")
        a("s_lshl_b32 s18, s18, 5")
        a("v_add_u32 v%d, s18, v%d" % (15, VI))
        a("v_lshrrev_b32 v%d, 5, v0" % t2)
        a("v_lshlrev_b32 v%d, 4, v%d" % (t2, t2))
        a("v_lshl_or_b32 v%d, v%d, 17, v%d" % (13, 15, t2))
        a("v_subrev_u32 v%d, 32, v%d" % (14, 15))
        a("v_max_i32 v%d, 0, v%d" % (14, 14))
        a("v_lshl_or_b32 v%d, v%d, 17, v%d" % (14, 14, t2))
        for kk in range(4):
            a("buffer_load_dwordx4 v[%d:%d], v13, s[%d:%d], 0 offen offset:%d" % (FF + 4 * kk, FF + 4 * kk + 3, R_CR, R_CR + 3, 32 * kk))
        for kk in range(4):
            a("buffer_load_dwordx4 v[%d:%d], v14, s[%d:%d], 0 offen offset:%d" % (FF + 16 + 4 * kk, FF + 16 + 4 * kk + 3, R_CI, R_CI + 3, 32 * kk))
        vm.issue("f", 8)
        a("v_and_b32 v%d, 3, v%d" % (t1, VI))
        a("v_and_b32 v%d, 4, v%d" % (t2, VI))
        a("v_lshl_or_b32 v%d, v%d, 1, v%d" % (t1, t2, t1))
        a("v_and_b32 v%d, 8, v%d" % (t2, VI))
        a("v_lshrrev_b32 v%d, 1, v%d" % (t2, t2))
        a("v_or_b32 v%d, v%d, v%d" % (t1, t1, t2))
        a("v_and_b32 v%d, 16, v%d" % (t2, VI))
        a("v_or_b32 v%d, v%d, v%d" % (t1, t1, t2))
        a("v_lshrrev_b32 v%d, 5, v0" % t0)
        a("v_and_b32 v%d, 15, v%d" % (t2, t1))
        a("v_xor_b32 v%d, v%d, v%d" % (t2, t2, t0))
        a("v_lshlrev_b32 v%d, 4, v%d" % (t2, t2))
        a("v_lshl_or_b32 v%d, v%d, 8, v%d" % (t2, t1, t2))
        a("s_lshr_b32 s18, s3, 1")
        a("s_lshl_b32 s18, s18, 13")
        a("s_add_u32 s18, s18, 0x%x" % (3 * SLOT))
        a("v_add_u32 v%d, s18, v%d" % (BA, t2))
        a("s_and_b32 s18, s3, 1")
        a("s_lshl_b32 s18, s18, 13")
        a("s_add_u32 s18, s18, 0x%x" % (3 * SLOT + 16384))
        a("v_add_u32 v%d, s18, v%d" % (BB, t2))
        for k in range(1, 8):
            a("v_xor_b32 v%d, 0x%x, v%d" % (BA + k, 32 * k, BA))
            a("v_xor_b32 v%d, 0x%x, v%d" % (BB + k, 32 * k, BB))
        for r in range(16):
            a("v_mov_b32 v%d, 0" % (ACU + r))

    issued = LA + 1
    for c in range(8):
        a("s_waitcnt vmcnt(%d)" % vm.wait_n(("c", c)))
        if c in (0, 1, 4, 7):
            st()
        a("s_barrier")
        lim = min(c + LA + 1, c + 4, 11) if c < 7 else 11
        while issued <= lim:
            stage(issued)
            issued += 1
        if c == 1:
            late_setup()
    assert issued == 12
    a("s_waitcnt vmcnt(%d)" % vm.wait_n(("c", 9)))
    a("v_cmp_lt_u32 vcc, 32, v15")
    for i in range(16):
        a("v_cndmask_b32 v%d, v%d, v%d, vcc" % (FF + i, FF + i, FF + 16 + i))
    st()
    a("s_barrier")
    st()
    T = 152
    a("v_lshlrev_b32 v%d, 4, v0" % T)
    BF = 160
    NB = 6
    DIST = 4

    def breads(gs):
        c = 8 + gs // 8
        k = gs % 8
        off = (SLOT if c in (9, 11) else 0)
        b = BF + (gs % NB) * 8
        a("ds_read_b128 v[%d:%d], v%d offset:%d" % (b, b + 3, BA + k, off))
        a("ds_read_b128 v[%d:%d], v%d offset:%d" % (b + 4, b + 7, BB + k, off))

    def bmf(gs):
        b = BF + (gs % NB) * 8
        a("v_mfma_f32_32x32x16_bf16 v[%d:%d], v[%d:%d], v[%d:%d], v[%d:%d]" % (ACU, ACU + 15, b, b + 3, b + 4, b + 7, ACU, ACU + 15))

    for half in range(2):
        g0 = 16 * half
        if half == 1:
            a("s_waitcnt vmcnt(%d)" % vm.wait_n(("c", 11)))
            st()
            a("s_barrier")
            st()
            for k in range(8):
                a("v_subrev_u32 v%d, 0x%x, v%d" % (BA + k, 3 * SLOT, BA + k))
                a("v_subrev_u32 v%d, 0x%x, v%d" % (BB + k, 3 * SLOT, BB + k))
        for g in range(g0, g0 + DIST):
            breads(g)
        for g in range(g0, g0 + 16):
            after = min(g0 + 15, g + DIST - 1) - g
            a("s_waitcnt lgkmcnt(%d)" % (2 * after))
            bmf(g)
            if g + DIST < g0 + 16:
                breads(g + DIST)
    st()
    UF = 112
    for d in range(8):
        a("v_cvt_pk_bf16_f32 v%d, v%d, v%d" % (UF + d, ACU + 2 * d, ACU + 2 * d + 1))
    a("s_lshl_b32 s18, s3, 11")
    a("s_add_u32 s18, s18, 0x%x" % (3 * SLOT))
    a("v_add_u32 v%d, s18, v%d" % (T + 1, T))
    a("ds_write_b128 v%d, v[%d:%d]" % (T + 1, UF, UF + 3))
    a("ds_write_b128 v%d, v[%d:%d] offset:1024" % (T + 1, UF + 4, UF + 7))
    a("s_xor_b32 s18, s3, 2")
    a("s_lshl_b32 s18, s18, 11")
    a("s_add_u32 s18, s18, 0x%x" % (3 * SLOT))
    a("v_add_u32 v%d, s18, v%d" % (T + 2, T))
    DH = 120 + 16
    a("s_lshr_b32 s18, s3, 1")
    a("s_cmp_eq_u32 s18, 0")
    a("s_cbranch_scc1 K1_SA0")
    for i in range(8):
        a("v_swap_b32 v%d, v%d" % (FF + i, FF + 8 + i))
    a.label("K1_SA0")
    a("v_mfma_f32_32x32x16_bf16 v[%d:%d], v[%d:%d], v[%d:%d], 0" % (DH, DH + 15, UF, UF + 3, FF, FF + 3))
    a("v_mfma_f32_32x32x16_bf16 v[%d:%d], v[%d:%d], v[%d:%d], v[%d:%d]" % (DH, DH + 15, UF + 4, UF + 7, FF + 4, FF + 7, DH, DH + 15))
    a("v_lshrrev_b32 v%d, 5, v0" % t0)
    a("v_lshlrev_b32 v%d, 4, v%d" % (t0, t0))
    a("v_lshl_or_b32 v%d, v15, 10, v%d" % (t0, t0))
    a("s_lshl_b32 s18, s%d, 16" % S_S2)
    a("s_lshl_b32 s19, s%d, 7" % S_J)
    a("s_add_u32 s18, s18, s19")
    a("s_and_b32 s19, s3, 1")
    a("s_lshl_b32 s19, s19, 6")
    a("s_add_u32 s18, s18, s19")
    a("s_add_u32 s18, s18, 0x%x" % WS_H)
    a("s_waitcnt lgkmcnt(0)")
    st()
    a("s_barrier")
    st()
    a("ds_read_b128 v[%d:%d], v%d" % (UF + 8, UF + 11, T + 2))
    a("ds_read_b128 v[%d:%d], v%d offset:1024" % (UF + 12, UF + 15, T + 2))
    a("s_waitcnt lgkmcnt(1)")
    a("v_mfma_f32_32x32x16_bf16 v[%d:%d], v[%d:%d], v[%d:%d], v[%d:%d]" % (DH, DH + 15, UF + 8, UF + 11, FF + 8, FF + 11, DH, DH + 15))
    a("s_waitcnt lgkmcnt(0)")
    a("v_mfma_f32_32x32x16_bf16 v[%d:%d], v[%d:%d], v[%d:%d], v[%d:%d]" % (DH, DH + 15, UF + 12, UF + 15, FF + 12, FF + 15, DH, DH + 15))
    HP = 112
    for d in range(8):
        a("v_cvt_pk_bf16_f32 v%d, v%d, v%d" % (HP + d, DH + 2 * d, DH + 2 * d + 1))
    sfx = (" " + gen.STSFX) if gen.STSFX else ""
    a("buffer_store_dwordx4 v[%d:%d], v%d, s[%d:%d], s18 offen%s" % (HP, HP + 3, t0, R_WS, R_WS + 3, sfx))
    a("buffer_store_dwordx4 v[%d:%d], v%d, s[%d:%d], s18 offen offset:32%s" % (HP + 4, HP + 7, t0, R_WS, R_WS + 3, sfx))
    if gen.STAMP:
        st()
        a("s_waitcnt vmcnt(0)")
        st()
        st.flush(26, t0)
    a("s_endpgm")

    a.label("K1_COMPUTE")
    vm = VMQ()
    vm.issue("pf", 1)
    st = Stamper(a, 250, 0)
    LANE = 0
    XA = 2
    WQ = 14
    WV = 17
    A1, A2 = 20, 24
    I0, I1 = 28, 32
    VI = 36
    VF = 37
    VZ = 38
    ACQ, ACK, ACV = 40, 56, 72
    FR = 88
    T = 152
    QF = 200
    a("s_mov_b32 s28, 0x%x" % LOG2E)
    a("s_mov_b32 s29, 0x%x" % NLOG2E)
    srd_const(R_X, 2048 * 1024)
    srd_const(R_W, 512 * 3072)
    srd_const(R_XB, 2048 * 1024)
    srd_const(R_DR, 512 * 1024)
    srd_const(R_DI, 512 * 1024)
    srd_const(R_WS, WS_SIZE)
    srd_const(R_WP, 32 * 512)
    srd_const(R_WO, 512 * 1024)
    a("v_mov_b32 v%d, 0" % VZ)
    a("s_or_b32 s14, s%d, s3" % S_RT)
    a("s_lshl_b32 s15, s%d, 3" % S_HP)
    a("s_waitcnt lgkmcnt(0)")
    for d, lo in ((R_X, P_X), (R_W, P_W), (R_XB, P_XB), (R_DR, P_DR), (R_DI, P_DI), (R_WS, P_WS), (R_WP, P_WP), (R_WO, P_WO)):
        srd_base(d, lo)
    st()
    if OPT["touch"]:
        touches(a, T + 40)
        vm.issue("touch", 2)
    a("s_add_u32 s16, s%d, s15" % P_DBG)
    a("s_addc_u32 s17, s%d, 0" % (P_DBG + 1))
    a("s_cmp_lg_u32 s14, 0")
    a("s_cbranch_scc1 K1_NOCLAIM")
    a("v_mov_b32 v%d, 1" % (T + 10))
    a("s_mov_b64 exec, 1")
    a("global_atomic_add v%d, v%d, v%d, s[16:17] sc0" % (T + 11, VZ, T + 10))
    a("s_mov_b64 exec, -1")
    a.label("K1_NOCLAIM")
    WF = T + 12
    wphi_frags(a, vm, LANE, WF, A1, A2, T + 20, S_HP)
    a("v_mov_b32 v%d, v%d" % (VI, T + 20))
    t0, t1, t2 = T + 24, T + 25, T + 26
    a("v_lshrrev_b32 v%d, 5, v0" % t0)
    a("s_lshl_b32 s18, s3, 5")
    a("v_add_u32 v%d, s18, v%d" % (t1, VI))
    a("v_lshrrev_b32 v%d, 1, v%d" % (t2, t1))
    a("v_and_b32 v%d, 7, v%d" % (t2, t2))
    a("v_xor_b32 v%d, v%d, v%d" % (t2, t2, t0))
    a("v_lshlrev_b32 v%d, 4, v%d" % (t2, t2))
    a("v_lshl_or_b32 v%d, v%d, 7, v%d" % (XA, t1, t2))
    for k in range(1, 4):
        a("v_xor_b32 v%d, 0x%x, v%d" % (XA + k, 32 * k, XA))
    for g in range(1, 3):
        for k in range(4):
            a("v_add_u32 v%d, 0x%x, v%d" % (XA + 4 * g + k, 65536 * g, XA + k))
    a("v_lshrrev_b32 v%d, 2, v0" % t1)
    a("v_and_b32 v%d, 3, v%d" % (t1, t1))
    a("v_lshl_or_b32 v%d, v%d, 3, v%d" % (t1, t0, t1))
    a("v_lshlrev_b32 v%d, 6, v%d" % (t1, t1))
    a("v_and_b32 v%d, 16, v0" % t2)
    a("v_lshl_or_b32 v%d, v%d, 1, v%d" % (t1, t2, t1))
    a("v_and_b32 v%d, 3, v0" % t2)
    a("v_lshl_or_b32 v%d, v%d, 3, v%d" % (WV, t2, t1))
    a("v_and_b32 v%d, 1, v0" % t2)
    a("v_lshl_or_b32 v%d, v%d, 4, v%d" % (WQ, t2, t1))
    a("v_and_b32 v%d, 2, v0" % t2)
    a("v_lshl_or_b32 v%d, v%d, 2, v%d" % (WQ, t2, WQ))
    for g in range(1, 3):
        a("v_add_u32 v%d, 0x%x, v%d" % (WQ + g, 65536 * g, WQ))
        a("v_add_u32 v%d, 0x%x, v%d" % (WV + g, 65536 * g, WV))
    a("v_lshlrev_b32 v%d, 3, v%d" % (t1, t0))
    a("v_sub_u32 v%d, v%d, v%d" % (t1, VI, t1))
    for ks, I in ((0, I0), (1, I1)):
        if ks:
            a("v_subrev_u32 v%d, 16, v%d" % (t1, t1))
        a("v_and_b32 v%d, 1, v%d" % (t2, t1))
        a("v_lshlrev_b32 v%d, 4, v%d" % (t2, t2))
        a("v_mov_b32 v%d, 0x3f80" % t0)
        a("v_lshlrev_b32 v%d, v%d, v%d" % (t2, t2, t0))
        a("v_ashrrev_i32 v%d, 1, v%d" % (t0, t1))
        for d in range(4):
            a("v_cmp_eq_u32 vcc, %d, v%d" % (d, t0))
            a("v_cndmask_b32 v%d, 0, v%d, vcc" % (I + d, t2))
    for r in range(48):
        a("v_mov_b32 v%d, 0" % (ACQ + r))
    a("v_lshlrev_b32 v%d, 4, v0" % T)

    def reads(g):
        c, k = g >> 2, g & 3
        slot = c % 5
        grp, off = slot >> 1, (slot & 1) * SLOT
        b = FR + (g & 3) * 16
        a("ds_read_b128 v[%d:%d], v%d offset:%d" % (b, b + 3, XA + 4 * grp + k, off))
        for p in range(3):
            areg = (WQ if p < 2 else WV) + grp
            for hf in range(2):
                o = off + 16384 + p * 4096 + (16 * k + 4 * hf) * 64
                d = b + 4 + p * 4 + hf * 2
                a("ds_read_b64_tr_b16 v[%d:%d], v%d offset:%d" % (d, d + 1, areg, o))

    def mfmas(g):
        b = FR + (g & 3) * 16
        a("v_mfma_f32_32x32x16_bf16 v[%d:%d], v[%d:%d], v[%d:%d], v[%d:%d]" % (ACQ, ACQ + 15, b + 4, b + 7, b, b + 3, ACQ, ACQ + 15))
        a("v_mfma_f32_32x32x16_bf16 v[%d:%d], v[%d:%d], v[%d:%d], v[%d:%d]" % (ACK, ACK + 15, b + 8, b + 11, b, b + 3, ACK, ACK + 15))
        a("v_mfma_f32_32x32x16_bf16 v[%d:%d], v[%d:%d], v[%d:%d], v[%d:%d]" % (ACV, ACV + 15, b, b + 3, b + 12, b + 15, ACV, ACV + 15))

    st()
    a("s_barrier")
    st()
    for g in range(3):
        reads(g)
    for g in range(32):
        issued_after = min(31, g + 2) - g
        a("s_waitcnt lgkmcnt(%d)" % (7 * issued_after))
        mfmas(g)
        if g + 3 < 32:
            if (g + 3) % 4 == 0:
                a("s_waitcnt lgkmcnt(0)")
                a("s_barrier")
            reads(g + 3)
        if g == 12:
            a("s_waitcnt vmcnt(0)")
            wphi_finish(a, WF, A1, A2, VI)
            a("s_cmp_lg_u32 s14, 0")
            a("s_cbranch_scc1 K1_NOZERO")
            a("v_readfirstlane_b32 s19, v%d" % (T + 11))
            a("s_mov_b32 s20, 1")
            a("s_cmp_lg_u32 s19, 0")
            a("s_cbranch_scc1 K1_NOZERO")
            a("s_mov_b32 s20, 0")
            zero_kv(a, T + 30, VZ, S_HP)
            a.label("K1_NOZERO")
        if g == 14 and OPT["wotouch"]:
            wotouch(a, T + 40)
        if g == 20:
            a("s_cmp_lg_u32 s14, 0")
            a("s_cbranch_scc1 K1_NOFLAG")
            a("s_cmp_lg_u32 s20, 0")
            a("s_cbranch_scc1 K1_NOFLAG")
            a("s_waitcnt vmcnt(0)")
            a("v_mov_b32 v%d, 1" % (T + 10))
            a("s_mov_b64 exec, 1")
            a("global_atomic_add v%d, v%d, s[16:17] offset:4" % (VZ, T + 10))
            a("s_mov_b64 exec, -1")
            a.label("K1_NOFLAG")

    st()
    KF = FR + 8
    VFm = FR + 16
    DP = FR + 32
    PH = FR + 48
    slot2 = 2 * SLOT
    for d in range(8):
        a("v_cvt_pk_bf16_f32 v%d, v%d, v%d" % (KF + d, ACK + 2 * d, ACK + 2 * d + 1))
    a("v_mfma_f32_32x32x16_bf16 v[%d:%d], v[%d:%d], v[%d:%d], 0" % (DP, DP + 15, A1, A1 + 3, KF, KF + 3))
    a("v_mfma_f32_32x32x16_bf16 v[%d:%d], v[%d:%d], v[%d:%d], v[%d:%d]" % (DP, DP + 15, A2, A2 + 3, KF + 4, KF + 7, DP, DP + 15))
    a("global_load_dword v%d, v%d, s[16:17] offset:4 sc1" % (VF, VZ))
    for d in range(8):
        a("v_cvt_pk_bf16_f32 v%d, v%d, v%d" % (QF + d, ACQ + 2 * d, ACQ + 2 * d + 1))
    for d in range(8):
        a("v_cvt_pk_bf16_f32 v%d, v%d, v%d" % (VFm + d, ACV + 2 * d, ACV + 2 * d + 1))
    AV0, AV1 = ACQ, ACQ + 8
    a("v_cmp_gt_u32 vcc, 16, v%d" % VI)
    a("v_mov_b32 v%d, 0x3f803f80" % (T + 1))
    for d in range(8):
        a("v_cndmask_b32 v%d, v%d, v%d, vcc" % (AV0 + d, T + 1, VFm + d))
        a("v_cndmask_b32 v%d, v%d, v%d, vcc" % (AV1 + d, VFm + d, T + 1))
    softmax_units(a, DP, T + 2, PH)
    st()
    a("s_barrier")
    st()
    for hd, D in ((0, ACK), (1, ACV)):
        p = PH + 8 * hd
        a("v_mfma_f32_32x32x16_bf16 v[%d:%d], v[%d:%d], v[%d:%d], 0" % (D, D + 15, p, p + 3, I0, I0 + 3))
        a("v_mfma_f32_32x32x16_bf16 v[%d:%d], v[%d:%d], v[%d:%d], v[%d:%d]" % (D, D + 15, p + 4, p + 7, I1, I1 + 3, D, D + 15))
    a("v_mfma_f32_32x32x16_bf16 v[%d:%d], v[%d:%d], v[%d:%d], 0" % (DP, DP + 15, A1, A1 + 3, QF, QF + 3))
    a("v_mfma_f32_32x32x16_bf16 v[%d:%d], v[%d:%d], v[%d:%d], v[%d:%d]" % (DP, DP + 15, A2, A2 + 3, QF + 4, QF + 7, DP, DP + 15))
    BK = FR
    for hd, D in ((0, ACK), (1, ACV)):
        for d in range(8):
            a("v_cvt_pk_bf16_f32 v%d, v%d, v%d" % (BK + 8 * hd + d, D + 2 * d, D + 2 * d + 1))
    KV0, KV1 = ACK, ACV
    for hd, D, AV in ((0, KV0, AV0), (1, KV1, AV1)):
        b = BK + 8 * hd
        a("v_mfma_f32_32x32x16_bf16 v[%d:%d], v[%d:%d], v[%d:%d], 0" % (D, D + 15, AV, AV + 3, b, b + 3))
        a("v_mfma_f32_32x32x16_bf16 v[%d:%d], v[%d:%d], v[%d:%d], v[%d:%d]" % (D, D + 15, AV + 4, AV + 7, b + 4, b + 7, D, D + 15))
    a("s_lshl_b32 s18, s3, 12")
    a("s_add_u32 s18, s18, 0x%x" % (slot2 + 16384))
    a("v_add_u32 v%d, s18, v%d" % (T + 1, T))
    a("s_lshl_b32 s18, s3, 12")
    a("s_add_u32 s18, s18, 0x%x" % (slot2 + 2048))
    a("v_lshlrev_b32 v%d, 2, v0" % (T + 26))
    a("v_add_u32 v%d, s18, v%d" % (T + 27, T + 26))
    a("v_cmp_gt_u32 vcc, 32, v0")
    a("ds_write_b128 v%d, v[%d:%d]" % (T + 1, KV0, KV0 + 3))
    a("ds_write_b128 v%d, v[%d:%d] offset:1024" % (T + 1, KV0 + 4, KV0 + 7))
    a("v_cndmask_b32 v%d, v%d, v%d, vcc" % (T + 28, KV1, KV0 + 8))
    a("ds_write_b128 v%d, v[%d:%d] offset:2048" % (T + 1, KV1 + 8, KV1 + 11))
    a("ds_write_b128 v%d, v[%d:%d] offset:3072" % (T + 1, KV1 + 12, KV1 + 15))
    a("ds_write_b32 v%d, v%d" % (T + 27, T + 28))
    a("s_waitcnt lgkmcnt(0)")
    st()
    a("s_barrier")
    st()
    a("s_lshl_b32 s18, s3, 10")
    a("s_add_u32 s18, s18, 0x%x" % (slot2 + 16384))
    a("v_add_u32 v%d, s18, v%d" % (T + 1, T))
    RB = FR
    for ww in range(4):
        a("ds_read_b128 v[%d:%d], v%d offset:%d" % (RB + 4 * ww, RB + 4 * ww + 3, T + 1, 4096 * ww))
    a("v_add_u32 v%d, 0x%x, v%d" % (T + 27, slot2 + 2048, T + 26))
    for ww in range(4):
        a("ds_read_b32 v%d, v%d offset:%d" % (RB + 16 + ww, T + 27, 4096 * ww))
    a("s_mov_b32 s21, 0")
    a.label("K1_POLL")
    a("s_waitcnt vmcnt(0)")
    a("v_readfirstlane_b32 s19, v%d" % VF)
    a("s_cmp_lg_u32 s19, 0")
    a("s_cbranch_scc1 K1_POLLDONE")
    a("s_add_u32 s21, s21, 1")
    a("s_cmp_lg_u32 s21, 4000")
    a("s_cbranch_scc1 K1_POLLMORE")
    a("v_mov_b32 v%d, 1" % (T + 29))
    a("s_mov_b64 exec, 1")
    a("global_atomic_add v%d, v%d, v%d, s[16:17] sc0" % (T + 30, VZ, T + 29))
    a("s_waitcnt vmcnt(0)")
    a("s_mov_b64 exec, -1")
    a("v_readfirstlane_b32 s19, v%d" % (T + 30))
    a("s_cmp_lg_u32 s19, 0")
    a("s_cbranch_scc1 K1_POLLMORE")
    zero_kv(a, T + 32, VZ, S_HP)
    a("s_waitcnt vmcnt(0)")
    a("s_mov_b64 exec, 1")
    a("global_atomic_add v%d, v%d, s[16:17] offset:4" % (VZ, T + 29))
    a("s_mov_b64 exec, -1")
    a.label("K1_POLLMORE")
    a("s_sleep 8")
    a("global_load_dword v%d, v%d, s[16:17] offset:4 sc1" % (VF, VZ))
    a("s_branch K1_POLL")
    a.label("K1_POLLDONE")
    st()
    a("s_waitcnt lgkmcnt(0)")
    for i in range(4):
        a("v_add_f32 v%d, v%d, v%d" % (RB + i, RB + i, RB + 4 + i))
        a("v_add_f32 v%d, v%d, v%d" % (RB + 8 + i, RB + 8 + i, RB + 12 + i))
    a("v_add_f32 v%d, v%d, v%d" % (RB + 16, RB + 16, RB + 17))
    a("v_add_f32 v%d, v%d, v%d" % (RB + 18, RB + 18, RB + 19))
    for i in range(4):
        a("v_add_f32 v%d, v%d, v%d" % (RB + i, RB + i, RB + 8 + i))
    a("v_add_f32 v%d, v%d, v%d" % (RB + 16, RB + 16, RB + 18))
    a("s_lshl_b32 s18, s%d, 12" % S_HP)
    a("s_lshl_b32 s19, s3, 10")
    a("s_add_u32 s18, s18, s19")
    for i in range(4):
        a("buffer_atomic_add_f32 v%d, v%d, s[%d:%d], s18 offen offset:%d" % (RB + i, T + 26, R_WS, R_WS + 3, 256 * i))
    a("s_cmp_lg_u32 s3, 0")
    a("s_cbranch_scc1 K1_CEND")
    a("s_lshl_b32 s18, s%d, 8" % S_HP)
    a("s_add_u32 s18, s18, 0x%x" % WS_Z)
    a("buffer_atomic_add_f32 v%d, v%d, s[%d:%d], s18 offen" % (RB + 16, T + 26, R_WS, R_WS + 3))
    a.label("K1_CEND")
    st()
    if OPT["x3pos"] == 0:
        a("s_barrier")
    softmax_units(a, DP, T + 2, PH, mid=(lambda: a("s_barrier")) if OPT["x3pos"] == 1 else None)
    a("s_lshl_b32 s18, s%d, 2" % S_RT)
    a("s_add_u32 s18, s18, s3")
    a("s_lshl_b32 s18, s18, 16")
    a("s_lshl_b32 s19, s%d, 12" % S_HP)
    a("s_add_u32 s18, s18, s19")
    a("s_add_u32 s18, s18, 0x%x" % WS_PHI)
    sfx = (" " + gen.STSFX) if gen.STSFX else ""
    for u in range(4):
        a("buffer_store_dwordx4 v[%d:%d], v%d, s[%d:%d], s18 offen offset:%d%s" % (PH + 4 * u, PH + 4 * u + 3, T, R_WS, R_WS + 3, 1024 * u, sfx))
    if gen.STAMP:
        st()
        a("s_waitcnt vmcnt(0)")
        st()
        st.flush(26, T)
    a.label("K1_END")
    a("s_endpgm")
```

```python
import sys
from dsl import Asm, vr, sr

NAME = "concat_heads__linear_kernel_hedgehog__spectral_fnet__prompt"

WS_KV = 0
WS_Z = 65536
WS_PHI = 1 << 20
WS_H = 8 << 20
WS_SIZE = 64 << 20

LOG2E = 0x3FB8AA3B
NLOG2E = 0xBFB8AA3B

SLOT = 32768


class VMQ:
    def __init__(self):
        self.q = []

    def issue(self, tag, n=1):
        self.q += [tag] * n

    def wait_n(self, tag):
        idx = max(i for i, t in enumerate(self.q) if t == tag)
        return len(self.q) - 1 - idx


def srd(a, d, lo, nbytes):
    a("s_mov_b32 s%d, s%d" % (d, lo))
    a("s_mov_b32 s%d, s%d" % (d + 1, lo + 1))
    a("s_mov_b32 s%d, 0x%x" % (d + 2, nbytes))
    a("s_mov_b32 s%d, 0x00020000" % (d + 3))


P_X, P_W, P_WP, P_WO, P_XB, P_CR, P_CI, P_DR = 32, 34, 36, 38, 40, 42, 44, 46
P_DI, P_OUT, P_DBG, P_WS = 48, 50, 52, 54
R_X, R_W, R_XB, R_DR, R_DI, R_WS, R_CR, R_CI, R_WP, R_WO, R_OUT = 56, 60, 64, 68, 72, 76, 80, 84, 88, 92, 96


def load_ptrs(a):
    a("s_load_dwordx16 s[32:47], s[0:1], 0")
    a("s_load_dwordx8 s[48:55], s[0:1], 64")


def softmax_units(a, X, T, P, mid=None):
    for r in range(0, 16, 2):
        t = T + r // 2
        a("v_cvt_pk_bf16_f32 v%d, v%d, v%d" % (t, X + r, X + r + 1))
    for r in range(0, 16, 2):
        t = T + r // 2
        a("v_lshlrev_b32 v%d, 16, v%d" % (X + r, t))
        a("v_and_b32 v%d, 0xffff0000, v%d" % (X + r + 1, t))
    MX = [T + 0, T + 1]
    MN = [T + 2, T + 3]
    TX = [T + 4, T + 5]
    TN = [T + 6, T + 7]
    for hd in range(2):
        x = X + 8 * hd
        a("v_max3_f32 v%d, v%d, v%d, v%d" % (MX[hd], x, x + 1, x + 2))
        a("v_min3_f32 v%d, v%d, v%d, v%d" % (MN[hd], x, x + 1, x + 2))
    for k in (3, 5):
        for hd in range(2):
            x = X + 8 * hd
            a("v_max3_f32 v%d, v%d, v%d, v%d" % (MX[hd], MX[hd], x + k, x + k + 1))
            a("v_min3_f32 v%d, v%d, v%d, v%d" % (MN[hd], MN[hd], x + k, x + k + 1))
    for hd in range(2):
        x = X + 8 * hd
        a("v_max_f32 v%d, v%d, v%d" % (MX[hd], MX[hd], x + 7))
        a("v_min_f32 v%d, v%d, v%d" % (MN[hd], MN[hd], x + 7))
    for hd in range(2):
        a("v_mov_b32 v%d, v%d" % (TX[hd], MX[hd]))
        a("v_mov_b32 v%d, v%d" % (TN[hd], MN[hd]))
    for hd in range(2):
        a("v_permlane32_swap_b32 v%d, v%d" % (MX[hd], TX[hd]))
        a("v_permlane32_swap_b32 v%d, v%d" % (MN[hd], TN[hd]))
    for hd in range(2):
        a("v_max_f32 v%d, v%d, v%d" % (MX[hd], MX[hd], TX[hd]))
        a("v_min_f32 v%d, v%d, v%d" % (MN[hd], MN[hd], TN[hd]))
    for hd in range(2):
        a("v_mul_f32 v%d, s29, v%d" % (MX[hd], MX[hd]))
        a("v_mul_f32 v%d, s28, v%d" % (MN[hd], MN[hd]))
    EM = T + 8
    for r in range(16):
        hd = r >> 3
        a("v_fma_f32 v%d, v%d, s29, v%d" % (EM + r, X + r, MN[hd]))
        a("v_fma_f32 v%d, v%d, s28, v%d" % (X + r, X + r, MX[hd]))
    for r in range(16):
        a("v_exp_f32 v%d, v%d" % (EM + r, EM + r))
        a("v_exp_f32 v%d, v%d" % (X + r, X + r))
    if mid is not None:
        mid()
    SP = [T + 0, T + 1]
    SM = [T + 2, T + 3]
    for hd in range(2):
        a("v_add_f32 v%d, v%d, v%d" % (SP[hd], X + 8 * hd, X + 8 * hd + 1))
        a("v_add_f32 v%d, v%d, v%d" % (SM[hd], EM + 8 * hd, EM + 8 * hd + 1))
        a("v_add_f32 v%d, v%d, v%d" % (TX[hd], X + 8 * hd + 2, X + 8 * hd + 3))
        a("v_add_f32 v%d, v%d, v%d" % (TN[hd], EM + 8 * hd + 2, EM + 8 * hd + 3))
    for k in (4, 6):
        for hd in range(2):
            a("v_add_f32 v%d, v%d, v%d" % (SP[hd], SP[hd], X + 8 * hd + k))
            a("v_add_f32 v%d, v%d, v%d" % (SM[hd], SM[hd], EM + 8 * hd + k))
            a("v_add_f32 v%d, v%d, v%d" % (TX[hd], TX[hd], X + 8 * hd + k + 1))
            a("v_add_f32 v%d, v%d, v%d" % (TN[hd], TN[hd], EM + 8 * hd + k + 1))
    for hd in range(2):
        a("v_add_f32 v%d, v%d, v%d" % (SP[hd], SP[hd], TX[hd]))
        a("v_add_f32 v%d, v%d, v%d" % (SM[hd], SM[hd], TN[hd]))
    for hd in range(2):
        a("v_mov_b32 v%d, v%d" % (TX[hd], SP[hd]))
        a("v_mov_b32 v%d, v%d" % (TN[hd], SM[hd]))
    for hd in range(2):
        a("v_permlane32_swap_b32 v%d, v%d" % (SP[hd], TX[hd]))
        a("v_permlane32_swap_b32 v%d, v%d" % (SM[hd], TN[hd]))
    for hd in range(2):
        a("v_add_f32 v%d, v%d, v%d" % (SP[hd], SP[hd], TX[hd]))
        a("v_add_f32 v%d, v%d, v%d" % (SM[hd], SM[hd], TN[hd]))
    for hd in range(2):
        a("v_rcp_f32 v%d, v%d" % (SP[hd], SP[hd]))
        a("v_rcp_f32 v%d, v%d" % (SM[hd], SM[hd]))
    for r in range(16):
        hd = r >> 3
        a("v_mul_f32 v%d, v%d, v%d" % (X + r, X + r, SP[hd]))
        a("v_mul_f32 v%d, v%d, v%d" % (EM + r, EM + r, SM[hd]))
    for hd in range(2):
        for d in range(4):
            a("v_cvt_pk_bf16_f32 v%d, v%d, v%d" % (P + 8 * hd + d, X + 8 * hd + 2 * d, X + 8 * hd + 2 * d + 1))
            a("v_cvt_pk_bf16_f32 v%d, v%d, v%d" % (P + 8 * hd + 4 + d, EM + 8 * hd + 2 * d, EM + 8 * hd + 2 * d + 1))


def wphi_frags(a, vm, LANE, WF, A1, A2, T, s_hp):
    a("v_and_b32 v%d, 31, v%d" % (T, LANE))
    a("v_lshrrev_b32 v%d, 5, v%d" % (T + 1, LANE))
    a("v_and_b32 v%d, 3, v%d" % (T + 2, T))
    a("v_and_b32 v%d, 4, v%d" % (T + 3, T))
    a("v_lshl_or_b32 v%d, v%d, 1, v%d" % (T + 2, T + 3, T + 2))
    a("v_and_b32 v%d, 8, v%d" % (T + 3, T))
    a("v_lshrrev_b32 v%d, 1, v%d" % (T + 3, T + 3))
    a("v_or_b32 v%d, v%d, v%d" % (T + 2, T + 2, T + 3))
    a("v_lshrrev_b32 v%d, 4, v%d" % (T + 3, T))
    a("v_lshl_or_b32 v%d, v%d, 8, v%d" % (T + 2, T + 3, T + 2))
    a("v_lshl_or_b32 v%d, v%d, 7, v%d" % (T + 2, T + 1, T + 2))
    a("v_lshlrev_b32 v%d, 1, v%d" % (T + 2, T + 2))
    a("s_lshl_b32 s27, s%d, 10" % s_hp)
    for j in range(8):
        a("buffer_load_ushort v%d, v%d, s[%d:%d], s27 offen offset:%d" % (WF + j, T + 2, R_WP, R_WP + 3, j * 32))
    vm.issue("wphi", 8)
    return T


def wphi_finish(a, WF, A1, A2, Ti):
    for d in range(4):
        a("v_lshl_or_b32 v%d, v%d, 16, v%d" % (WF + d * 2, WF + 2 * d + 1, WF + 2 * d))
    a("v_cmp_gt_u32 vcc, 16, v%d" % Ti)
    for d in range(4):
        a("v_cndmask_b32 v%d, 0, v%d, vcc" % (A1 + d, WF + 2 * d))
        a("v_cndmask_b32 v%d, v%d, 0, vcc" % (A2 + d, WF + 2 * d))


STAMP = False
WS_ST = 32 << 20


class Stamper:
    def __init__(self, a, vreg, kid):
        self.a, self.v, self.k, self.n = a, vreg, kid, 0

    def __call__(self):
        if not STAMP:
            return
        a = self.a
        a("s_memrealtime s[100:101]")
        a("s_waitcnt lgkmcnt(0)")
        a("v_writelane_b32 v%d, s100, %d" % (self.v, self.n))
        if self.n == 0:
            a("s_memtime s[100:101]")
            a("s_waitcnt lgkmcnt(0)")
            a("v_writelane_b32 v%d, s100, 62" % self.v)
        self.n += 1

    def flush(self, wave_sgpr_expr_reg, t0):
        if not STAMP:
            return
        a = self.a
        a("s_memtime s[100:101]")
        a("s_waitcnt lgkmcnt(0)")
        a("v_writelane_b32 v%d, s100, 63" % self.v)
        a("s_lshl_b32 s100, s2, 3")
        a("s_add_u32 s100, s100, s%d" % wave_sgpr_expr_reg)
        a("s_lshl_b32 s100, s100, 8")
        a("s_add_u32 s100, s100, 0x%x" % (WS_ST + self.k * 256 * 8 * 256))
        a("v_mbcnt_lo_u32_b32 v%d, -1, 0" % t0)
        a("v_mbcnt_hi_u32_b32 v%d, -1, v%d" % (t0, t0))
        a("v_lshlrev_b32 v%d, 2, v%d" % (t0, t0))
        a("buffer_store_dword v%d, v%d, s[%d:%d], s100 offen" % (self.v, t0, R_WS, R_WS + 3))


DBGST = False
OPT = dict(touch=1, rot=0, wotouch=1, la=2, x3pos=0, v=2)
STSFX = ""


def dbgst(a, word, inv=False, k2=False, wave_sgpr=26, vr0=252):
    if not DBGST:
        return
    global _dbg_uid
    _dbg_uid += 1
    L = "DBGST_w%d" % word
    a("s_and_b32 s100, s%d, 3" % wave_sgpr)
    a("s_cmp_lg_u32 s100, 0")
    a("s_cbranch_scc1 %s" % L)
    a("s_memrealtime s[100:101]")
    a("s_waitcnt lgkmcnt(0)")
    if inv:
        a("s_not_b32 s100, s100")
    a("v_mov_b32 v%d, s100" % vr0)
    a("v_mov_b32 v%d, 0" % (vr0 + 1))
    a("s_mov_b64 exec, 1")
    a("global_atomic_umax v%d, v%d, s[%d:%d] offset:%d" % (vr0 + 1, vr0, P_DBG, P_DBG + 1, word * 4 - (512 if k2 else 0)))
    a("s_mov_b64 exec, -1")
    a.label(L)


_dbg_uid = 0


def touches(a, T):
    VXo, VWo, VBo, VDo, D0 = T, T + 1, T + 2, T + 3, T + 4
    a("v_lshlrev_b32 v%d, 10, v0" % VXo)
    a("v_lshrrev_b32 v%d, 2, v0" % VWo)
    a("v_mul_u32_u24 v%d, 0xc00, v%d" % (VWo, VWo))
    a("v_and_b32 v%d, 3, v0" % D0)
    a("v_lshl_or_b32 v%d, v%d, 7, v%d" % (VWo, D0, VWo))
    a("v_and_b32 v%d, 1, v0" % D0)
    a("v_lshlrev_b32 v%d, 7, v%d" % (D0, D0))
    a("v_lshrrev_b32 v%d, 1, v0" % VDo)
    a("v_lshl_or_b32 v%d, v%d, 10, v%d" % (VDo, VDo, D0))
    a("v_and_b32 v%d, 0x1fff, v%d" % (VBo, VDo))
    a("v_and_b32 v%d, 0xfff, v%d" % (VBo, VBo))
    a("v_lshrrev_b32 v%d, 3, v0" % D0)
    a("v_lshl_or_b32 v%d, v%d, 15, v%d" % (VBo, D0, VBo))
    a("s_lshl_b32 s18, s5, 2")
    a("s_add_u32 s18, s18, s3")
    a("s_lshr_b32 s19, s4, 1")
    a("s_lshl_b32 s19, s19, 19")
    a("s_and_b32 s20, s4, 1")
    a("s_lshl_b32 s20, s20, 9")

    def atouch(nreg, dst, uid):
        a("s_mul_i32 s22, s%d, 205" % nreg)
        a("s_lshr_b32 s22, s22, 12")
        a("s_mul_i32 s23, s22, 20")
        a("s_sub_u32 s23, s%d, s23" % nreg)
        a("s_cmp_ge_u32 s23, 8")
        a("s_cbranch_scc1 K1_TW%d" % uid)
        a("s_lshl_b32 s23, s23, 16")
        a("s_lshl_b32 s22, s22, 7")
        a("s_add_u32 s23, s23, s22")
        a("s_add_u32 s23, s23, s19")
        a("buffer_load_dword v%d, v%d, s[%d:%d], s23 offen" % (dst, VXo, R_X, R_X + 3))
        a("s_branch K1_TE%d" % uid)
        a.label("K1_TW%d" % uid)
        a("s_sub_u32 s23, s23, 8")
        a("s_lshr_b32 s24, s23, 2")
        a("s_and_b32 s23, s23, 3")
        a("s_lshl_b32 s22, s22, 2")
        a("s_add_u32 s22, s22, s23")
        a("s_mul_i32 s22, s22, 0xc000")
        a("s_lshl_b32 s24, s24, 10")
        a("s_add_u32 s22, s22, s24")
        a("s_add_u32 s22, s22, s20")
        a("buffer_load_dword v%d, v%d, s[%d:%d], s22 offen" % (dst, VWo, R_W, R_W + 3))
        a.label("K1_TE%d" % uid)

    atouch(18, D0, 0)
    a("s_cmp_ge_u32 s18, 32")
    a("s_cbranch_scc1 K1_TB")
    a("s_add_u32 s21, s18, 128")
    atouch(21, D0 + 1, 1)
    a("s_branch K1_TDONE")
    a.label("K1_TB")
    a("s_sub_u32 s21, s18, 32")
    a("s_mul_i32 s22, s21, 171")
    a("s_lshr_b32 s22, s22, 12")
    a("s_mul_i32 s23, s22, 24")
    a("s_sub_u32 s23, s21, s23")
    a("s_lshl_b32 s22, s22, 8")
    a("s_cmp_ge_u32 s23, 8")
    a("s_cbranch_scc1 K1_TBD")
    a("s_lshl_b32 s23, s23, 18")
    a("s_lshl_b32 s24, s4, 12")
    a("s_add_u32 s23, s23, s24")
    a("s_add_u32 s23, s23, s22")
    a("buffer_load_dword v%d, v%d, s[%d:%d], s23 offen" % (D0 + 1, VBo, R_XB, R_XB + 3))
    a("s_branch K1_TDONE")
    a.label("K1_TBD")
    a("s_sub_u32 s23, s23, 8")
    a("s_and_b32 s24, s23, 7")
    a("s_lshl_b32 s24, s24, 15")
    a("s_add_u32 s24, s24, s22")
    a("s_cmp_ge_u32 s23, 8")
    a("s_cbranch_scc1 K1_TBI")
    a("buffer_load_dword v%d, v%d, s[%d:%d], s24 offen" % (D0 + 1, VDo, R_DR, R_DR + 3))
    a("s_branch K1_TDONE")
    a.label("K1_TBI")
    a("buffer_load_dword v%d, v%d, s[%d:%d], s24 offen" % (D0 + 1, VDo, R_DI, R_DI + 3))
    a.label("K1_TDONE")
    return 2


def wotouch(a, T):
    a("s_lshl_b32 s18, s5, 2")
    a("s_add_u32 s18, s18, s3")
    a("s_cmp_ge_u32 s18, 64")
    a("s_cbranch_scc1 K1_WOT")
    a("s_lshl_b32 s18, s18, 13")
    a("v_lshlrev_b32 v%d, 7, v0" % T)
    a("buffer_load_dword v%d, v%d, s[%d:%d], s18 offen" % (T + 1, T, R_WO, R_WO + 3))
    a.label("K1_WOT")


def gen_k1(a):
    K = "k1_kernel"
    a.raw(".globl %s\n.p2align 8\n.type %s,@function\n%s:" % (K, K, K))
    a("s_cmp_ge_u32 s2, 256")
    a("s_cbranch_scc1 K1_END")
    load_ptrs(a)
    a("v_lshrrev_b32 v1, 6, v0")
    a("v_and_b32 v0, 63, v0")
    a("v_readfirstlane_b32 s3, v1")
    a("s_mov_b32 s26, s3")
    a("s_and_b32 s4, s2, 7")
    a("s_lshr_b32 s5, s2, 3")
    a("s_lshr_b32 s6, s5, 3")
    a("s_and_b32 s7, s5, 7")
    a("s_lshr_b32 s8, s4, 1")
    a("s_lshl_b32 s8, s8, 2")
    a("s_add_u32 s8, s8, s6")
    a("s_and_b32 s9, s4, 1")
    a("s_lshl_b32 s9, s9, 3")
    a("s_add_u32 s9, s9, s7")
    a("s_lshl_b32 s10, s4, 2")
    a("s_add_u32 s10, s10, s6")
    a("s_mov_b32 s28, 0x%x" % LOG2E)
    a("s_mov_b32 s29, 0x%x" % NLOG2E)
    a("s_waitcnt lgkmcnt(0)")
    srd(a, R_X, P_X, 2048 * 1024)
    srd(a, R_W, P_W, 512 * 3072)
    srd(a, R_XB, P_XB, 2048 * 1024)
    srd(a, R_DR, P_DR, 512 * 1024)
    srd(a, R_DI, P_DI, 512 * 1024)
    srd(a, R_WS, P_WS, WS_SIZE)
    srd(a, R_CR, P_CR, 2048 * 4096)
    srd(a, R_CI, P_CI, 2048 * 4096)
    srd(a, R_WP, P_WP, 32 * 512)
    srd(a, R_WO, P_WO, 512 * 1024)
    a("s_cmp_ge_u32 s3, 4")
    a("s_cbranch_scc1 K1_HELPER")
    S_RT, S_HP, S_S2, S_J = 8, 9, 10, 7

    vm = VMQ()
    st = Stamper(a, 250, 0)
    st()
    dbgst(a, 0, inv=True)
    dbgst(a, 5)
    LANE = 0
    XA = 2
    WQ = 14
    WV = 17
    A1, A2 = 20, 24
    I0, I1 = 28, 32
    VI = 36
    VF = 37
    VZ = 38
    ACQ, ACK, ACV = 40, 56, 72
    FR = 88
    T = 152
    a("s_getpc_b64 s[12:13]")
    a("v_lshlrev_b32 v%d, 6, v0" % T)
    NPF = 6
    for i in range(NPF):
        a("global_load_dword v%d, v%d, s[12:13] offset:0" % (T + 1 + i, T))
        if i != NPF - 1:
            a("v_add_u32 v%d, 0x1000, v%d" % (T, T))
    vm.issue("pf", NPF)
    a("s_or_b32 s14, s%d, s3" % S_RT)
    a("v_mov_b32 v%d, 0" % VZ)
    a("s_lshl_b32 s15, s%d, 3" % S_HP)
    if DBGST:
        a("s_add_u32 s15, s15, 128")
    a("s_add_u32 s16, s%d, s15" % P_DBG)
    a("s_addc_u32 s17, s%d, 0" % (P_DBG + 1))
    a("s_cmp_lg_u32 s14, 0")
    a("s_cbranch_scc1 K1_NOCLAIM")
    a("v_mov_b32 v%d, 1" % (T + 10))
    a("s_mov_b64 exec, 1")
    a("global_atomic_add v%d, v%d, v%d, s[16:17] sc0" % (T + 11, VZ, T + 10))
    a("s_mov_b64 exec, -1")
    a.label("K1_NOCLAIM")
    WF = T + 12
    wphi_frags(a, vm, LANE, WF, A1, A2, T + 20, S_HP)
    a("v_mov_b32 v%d, v%d" % (VI, T + 20))
    NT = 0
    if OPT["touch"]:
        NT = touches(a, T + 40)
        vm.issue("touch", NT)
    t0, t1, t2 = T + 24, T + 25, T + 26
    a("v_lshrrev_b32 v%d, 5, v0" % t0)
    a("s_lshl_b32 s18, s3, 5")
    a("v_add_u32 v%d, s18, v%d" % (t1, VI))
    a("v_lshrrev_b32 v%d, 1, v%d" % (t2, t1))
    a("v_and_b32 v%d, 7, v%d" % (t2, t2))
    a("v_xor_b32 v%d, v%d, v%d" % (t2, t2, t0))
    a("v_lshlrev_b32 v%d, 4, v%d" % (t2, t2))
    a("v_lshl_or_b32 v%d, v%d, 7, v%d" % (XA, t1, t2))
    for k in range(1, 4):
        a("v_xor_b32 v%d, 0x%x, v%d" % (XA + k, 32 * k, XA))
    for g in range(1, 3):
        for k in range(4):
            a("v_add_u32 v%d, 0x%x, v%d" % (XA + 4 * g + k, 65536 * g, XA + k))
    a("v_lshrrev_b32 v%d, 2, v0" % t1)
    a("v_and_b32 v%d, 3, v%d" % (t1, t1))
    a("v_lshl_or_b32 v%d, v%d, 3, v%d" % (t1, t0, t1))
    a("v_lshlrev_b32 v%d, 6, v%d" % (t1, t1))
    a("v_and_b32 v%d, 16, v0" % t2)
    a("v_lshl_or_b32 v%d, v%d, 1, v%d" % (t1, t2, t1))
    a("v_and_b32 v%d, 3, v0" % t2)
    a("v_lshl_or_b32 v%d, v%d, 3, v%d" % (WV, t2, t1))
    a("v_and_b32 v%d, 1, v0" % t2)
    a("v_lshl_or_b32 v%d, v%d, 4, v%d" % (WQ, t2, t1))
    a("v_and_b32 v%d, 2, v0" % t2)
    a("v_lshl_or_b32 v%d, v%d, 2, v%d" % (WQ, t2, WQ))
    for g in range(1, 3):
        a("v_add_u32 v%d, 0x%x, v%d" % (WQ + g, 65536 * g, WQ))
        a("v_add_u32 v%d, 0x%x, v%d" % (WV + g, 65536 * g, WV))
    a("v_lshlrev_b32 v%d, 3, v%d" % (t1, t0))
    a("v_sub_u32 v%d, v%d, v%d" % (t1, VI, t1))
    for ks, I in ((0, I0), (1, I1)):
        if ks:
            a("v_subrev_u32 v%d, 16, v%d" % (t1, t1))
        a("v_and_b32 v%d, 1, v%d" % (t2, t1))
        a("v_lshlrev_b32 v%d, 4, v%d" % (t2, t2))
        a("v_mov_b32 v%d, 0x3f80" % t0)
        a("v_lshlrev_b32 v%d, v%d, v%d" % (t2, t2, t0))
        a("v_ashrrev_i32 v%d, 1, v%d" % (t0, t1))
        for d in range(4):
            a("v_cmp_eq_u32 vcc, %d, v%d" % (d, t0))
            a("v_cndmask_b32 v%d, 0, v%d, vcc" % (I + d, t2))
    for r in range(48):
        a("v_mov_b32 v%d, 0" % (ACQ + r))

    def reads(g):
        c, k = g >> 2, g & 3
        slot = c % 5
        grp, off = slot >> 1, (slot & 1) * SLOT
        b = FR + (g & 3) * 16
        a("ds_read_b128 v[%d:%d], v%d offset:%d" % (b, b + 3, XA + 4 * grp + k, off))
        for p in range(3):
            areg = (WQ if p < 2 else WV) + grp
            for hf in range(2):
                o = off + 16384 + p * 4096 + (16 * k + 4 * hf) * 64
                d = b + 4 + p * 4 + hf * 2
                a("ds_read_b64_tr_b16 v[%d:%d], v%d offset:%d" % (d, d + 1, areg, o))

    def mfmas(g):
        b = FR + (g & 3) * 16
        a("v_mfma_f32_32x32x16_bf16 v[%d:%d], v[%d:%d], v[%d:%d], v[%d:%d]" % (ACQ, ACQ + 15, b + 4, b + 7, b, b + 3, ACQ, ACQ + 15))
        a("v_mfma_f32_32x32x16_bf16 v[%d:%d], v[%d:%d], v[%d:%d], v[%d:%d]" % (ACK, ACK + 15, b + 8, b + 11, b, b + 3, ACK, ACK + 15))
        a("v_mfma_f32_32x32x16_bf16 v[%d:%d], v[%d:%d], v[%d:%d], v[%d:%d]" % (ACV, ACV + 15, b, b + 3, b + 12, b + 15, ACV, ACV + 15))

    st()
    a("s_barrier")
    st()
    dbgst(a, 1)
    for g in range(3):
        reads(g)
    for g in range(32):
        issued_after = min(31, g + 2) - g
        a("s_waitcnt lgkmcnt(%d)" % (7 * issued_after))
        mfmas(g)
        if g + 3 < 32:
            if (g + 3) % 4 == 0:
                a("s_waitcnt lgkmcnt(0)")
                a("s_barrier")
            reads(g + 3)
        if g == 2:
            a("s_waitcnt vmcnt(%d)" % NT)
            wphi_finish(a, WF, A1, A2, VI)
        if g == 6:
            a("s_cmp_lg_u32 s14, 0")
            a("s_cbranch_scc1 K1_NOZERO")
            a("v_readfirstlane_b32 s19, v%d" % (T + 11))
            a("s_mov_b32 s20, 1")
            a("s_cmp_lg_u32 s19, 0")
            a("s_cbranch_scc1 K1_NOZERO")
            a("s_mov_b32 s20, 0")
            zero_kv(a, T + 30, VZ, S_HP)
            a.label("K1_NOZERO")
        if g == 14:
            a("s_cmp_lg_u32 s14, 0")
            a("s_cbranch_scc1 K1_NOFLAG")
            a("s_cmp_lg_u32 s20, 0")
            a("s_cbranch_scc1 K1_NOFLAG")
            a("s_waitcnt vmcnt(0)")
            a("v_mov_b32 v%d, 1" % (T + 10))
            a("s_mov_b64 exec, 1")
            a("global_atomic_add v%d, v%d, s[16:17] offset:4" % (VZ, T + 10))
            a("s_mov_b64 exec, -1")
            a.label("K1_NOFLAG")
        if g == 16 and OPT["wotouch"]:
            wotouch(a, T + 40)
        if g == 28:
            a("global_load_dword v%d, v%d, s[16:17] offset:4 sc1" % (VF, VZ))

    st()
    QF = FR
    KF = FR + 8
    VFm = FR + 16
    DP = FR + 32
    PH = FR + 48
    slot2 = 2 * SLOT
    for d in range(8):
        a("v_cvt_pk_bf16_f32 v%d, v%d, v%d" % (QF + d, ACQ + 2 * d, ACQ + 2 * d + 1))
    a("s_lshl_b32 s18, s3, 12")
    a("s_add_u32 s18, s18, 0x%x" % slot2)
    a("v_lshlrev_b32 v%d, 4, v0" % T)
    a("v_add_u32 v%d, s18, v%d" % (T, T))
    a("ds_write_b128 v%d, v[%d:%d]" % (T, QF, QF + 3))
    a("ds_write_b128 v%d, v[%d:%d] offset:1024" % (T, QF + 4, QF + 7))
    for d in range(8):
        a("v_cvt_pk_bf16_f32 v%d, v%d, v%d" % (KF + d, ACK + 2 * d, ACK + 2 * d + 1))
    a("s_waitcnt lgkmcnt(0)")
    a("s_barrier")
    st()
    dbgst(a, 2)
    a("v_mfma_f32_32x32x16_bf16 v[%d:%d], v[%d:%d], v[%d:%d], 0" % (DP, DP + 15, A1, A1 + 3, KF, KF + 3))
    a("v_mfma_f32_32x32x16_bf16 v[%d:%d], v[%d:%d], v[%d:%d], v[%d:%d]" % (DP, DP + 15, A2, A2 + 3, KF + 4, KF + 7, DP, DP + 15))
    for d in range(8):
        a("v_cvt_pk_bf16_f32 v%d, v%d, v%d" % (VFm + d, ACV + 2 * d, ACV + 2 * d + 1))
    AV0, AV1 = ACQ, ACQ + 8
    a("v_cmp_gt_u32 vcc, 16, v%d" % VI)
    a("v_mov_b32 v%d, 0x3f803f80" % (T + 1))
    for d in range(8):
        a("v_cndmask_b32 v%d, v%d, v%d, vcc" % (AV0 + d, T + 1, VFm + d))
        a("v_cndmask_b32 v%d, v%d, v%d, vcc" % (AV1 + d, VFm + d, T + 1))
    softmax_units(a, DP, T + 2, PH)
    st()
    for hd, D in ((0, ACK), (1, ACV)):
        p = PH + 8 * hd
        a("v_mfma_f32_32x32x16_bf16 v[%d:%d], v[%d:%d], v[%d:%d], 0" % (D, D + 15, p, p + 3, I0, I0 + 3))
        a("v_mfma_f32_32x32x16_bf16 v[%d:%d], v[%d:%d], v[%d:%d], v[%d:%d]" % (D, D + 15, p + 4, p + 7, I1, I1 + 3, D, D + 15))
    BK = FR
    for hd, D in ((0, ACK), (1, ACV)):
        for d in range(8):
            a("v_cvt_pk_bf16_f32 v%d, v%d, v%d" % (BK + 8 * hd + d, D + 2 * d, D + 2 * d + 1))
    KV0, KV1 = FR + 16, FR + 32
    for hd, D, AV in ((0, KV0, AV0), (1, KV1, AV1)):
        b = BK + 8 * hd
        a("v_mfma_f32_32x32x16_bf16 v[%d:%d], v[%d:%d], v[%d:%d], 0" % (D, D + 15, AV, AV + 3, b, b + 3))
        a("v_mfma_f32_32x32x16_bf16 v[%d:%d], v[%d:%d], v[%d:%d], v[%d:%d]" % (D, D + 15, AV + 4, AV + 7, b + 4, b + 7, D, D + 15))
    a("s_lshl_b32 s18, s3, 12")
    a("s_add_u32 s18, s18, 0x%x" % (slot2 + 16384))
    a("v_lshlrev_b32 v%d, 4, v0" % T)
    a("v_add_u32 v%d, s18, v%d" % (T + 1, T))
    a("ds_write_b128 v%d, v[%d:%d]" % (T + 1, KV0, KV0 + 3))
    a("ds_write_b128 v%d, v[%d:%d] offset:1024" % (T + 1, KV0 + 4, KV0 + 7))
    a("ds_write_b128 v%d, v[%d:%d] offset:2048" % (T + 1, KV1 + 8, KV1 + 11))
    a("ds_write_b128 v%d, v[%d:%d] offset:3072" % (T + 1, KV1 + 12, KV1 + 15))
    a("v_cmp_gt_u32 vcc, 32, v0")
    a("v_cndmask_b32 v%d, v%d, v%d, vcc" % (T + 2, KV1, KV0 + 8))
    a("s_lshl_b32 s18, s3, 12")
    a("s_add_u32 s18, s18, 0x%x" % (slot2 + 2048))
    a("v_lshlrev_b32 v%d, 2, v0" % (T + 3))
    a("v_add_u32 v%d, s18, v%d" % (T + 4, T + 3))
    a("ds_write_b32 v%d, v%d" % (T + 4, T + 2))
    a("s_waitcnt lgkmcnt(0)")
    st()
    a("s_barrier")
    st()
    a("s_lshl_b32 s18, s3, 10")
    a("s_add_u32 s18, s18, 0x%x" % (slot2 + 16384))
    a("v_add_u32 v%d, s18, v%d" % (T + 1, T))
    RB = FR
    for ww in range(4):
        a("ds_read_b128 v[%d:%d], v%d offset:%d" % (RB + 4 * ww, RB + 4 * ww + 3, T + 1, 4096 * ww))
    a("v_add_u32 v%d, 0x%x, v%d" % (T + 4, slot2 + 2048, T + 3))
    for ww in range(4):
        a("ds_read_b32 v%d, v%d offset:%d" % (RB + 16 + ww, T + 4, 4096 * ww))
    a("s_mov_b32 s21, 0")
    a.label("K1_POLL")
    a("s_waitcnt vmcnt(0)")
    a("v_readfirstlane_b32 s19, v%d" % VF)
    a("s_cmp_lg_u32 s19, 0")
    a("s_cbranch_scc1 K1_POLLDONE")
    a("s_add_u32 s21, s21, 1")
    a("s_cmp_lg_u32 s21, 4000")
    a("s_cbranch_scc1 K1_POLLMORE")
    a("v_mov_b32 v%d, 1" % (T + 10))
    a("s_mov_b64 exec, 1")
    a("global_atomic_add v%d, v%d, v%d, s[16:17] sc0" % (T + 11, VZ, T + 10))
    a("s_waitcnt vmcnt(0)")
    a("s_mov_b64 exec, -1")
    a("v_readfirstlane_b32 s19, v%d" % (T + 11))
    a("s_cmp_lg_u32 s19, 0")
    a("s_cbranch_scc1 K1_POLLMORE")
    zero_kv(a, T + 30, VZ, S_HP)
    a("s_waitcnt vmcnt(0)")
    a("s_mov_b64 exec, 1")
    a("global_atomic_add v%d, v%d, s[16:17] offset:4" % (VZ, T + 10))
    a("s_mov_b64 exec, -1")
    a.label("K1_POLLMORE")
    a("s_sleep 8")
    a("global_load_dword v%d, v%d, s[16:17] offset:4 sc1" % (VF, VZ))
    a("s_branch K1_POLL")
    a.label("K1_POLLDONE")
    st()
    a("s_waitcnt lgkmcnt(0)")
    for i in range(4):
        a("v_add_f32 v%d, v%d, v%d" % (RB + i, RB + i, RB + 4 + i))
        a("v_add_f32 v%d, v%d, v%d" % (RB + 8 + i, RB + 8 + i, RB + 12 + i))
    a("v_add_f32 v%d, v%d, v%d" % (RB + 16, RB + 16, RB + 17))
    a("v_add_f32 v%d, v%d, v%d" % (RB + 18, RB + 18, RB + 19))
    for i in range(4):
        a("v_add_f32 v%d, v%d, v%d" % (RB + i, RB + i, RB + 8 + i))
    a("v_add_f32 v%d, v%d, v%d" % (RB + 16, RB + 16, RB + 18))
    a("s_lshl_b32 s18, s%d, 12" % S_HP)
    a("s_lshl_b32 s19, s3, 10")
    a("s_add_u32 s18, s18, s19")
    for i in range(4):
        a("buffer_atomic_add_f32 v%d, v%d, s[%d:%d], s18 offen offset:%d" % (RB + i, T + 3, R_WS, R_WS + 3, 256 * i))
    a("s_cmp_lg_u32 s3, 0")
    a("s_cbranch_scc1 K1_CEND")
    a("s_lshl_b32 s18, s%d, 8" % S_HP)
    a("s_add_u32 s18, s18, 0x%x" % WS_Z)
    a("buffer_atomic_add_f32 v%d, v%d, s[%d:%d], s18 offen" % (RB + 16, T + 3, R_WS, R_WS + 3))
    a.label("K1_CEND")
    dbgst(a, 3)
    if STAMP:
        st()
        a("s_waitcnt vmcnt(0)")
        st()
        st.flush(26, T)
    a("s_endpgm")

    a.label("K1_HELPER")
    vm = VMQ()
    st = Stamper(a, 250, 0)
    st()
    a("s_sub_u32 s3, s3, 4")
    VX, VW, VB, VD = 1, 2, 3, 4
    t0, t1, t2 = 10, 11, 12
    a("s_and_b32 s18, s3, 1")
    a("s_lshl_b32 s18, s18, 2")
    a("v_lshrrev_b32 v%d, 4, v0" % t0)
    a("v_add_u32 v%d, s18, v%d" % (t1, t0))
    a("v_and_b32 v%d, 7, v%d" % (t1, t1))
    a("v_and_b32 v%d, 7, v0" % t2)
    a("v_xor_b32 v%d, v%d, v%d" % (t1, t1, t2))
    a("v_lshlrev_b32 v%d, 4, v%d" % (t1, t1))
    a("v_lshrrev_b32 v%d, 3, v0" % t2)
    a("v_lshl_or_b32 v%d, v%d, 10, v%d" % (VX, t2, t1))
    a("v_lshrrev_b32 v%d, 2, v0" % t1)
    a("v_mul_u32_u24 v%d, 0xc00, v%d" % (t1, t1))
    a("v_and_b32 v%d, 3, v0" % t2)
    a("v_lshl_or_b32 v%d, v%d, 4, v%d" % (VW, t2, t1))
    a("s_lshl_b32 s12, s%d, 17" % S_RT)
    a("s_lshl_b32 s18, s3, 13")
    a("s_add_u32 s12, s12, s18")
    a("s_mul_i32 s13, s3, 0xc000")
    a("s_lshl_b32 s18, s%d, 6" % S_HP)
    a("s_add_u32 s13, s13, s18")
    a("s_lshl_b32 s14, s3, 10")

    def stageA(c):
        slot = (c % 5) * SLOT
        if OPT["rot"]:
            a("s_add_u32 s22, s%d, %d" % (S_J, c))
            a("s_and_b32 s22, s22, 7")
        else:
            a("s_mov_b32 s22, %d" % c)
        a("s_lshl_b32 s23, s22, 7")
        a("s_add_u32 s23, s23, s12")
        a("s_mul_i32 s24, s22, 0x30000")
        a("s_add_u32 s24, s24, s13")
        for m in range(4):
            a("s_add_u32 m0, s14, 0x%x" % (slot + m * 4096))
            a("s_add_u32 s18, s23, 0x%x" % (m * 32768))
            a("buffer_load_dwordx4 v%d, s[%d:%d], s18 offen lds" % (VX, R_X, R_X + 3))
        for p in range(3):
            a("s_add_u32 m0, s14, 0x%x" % (slot + 16384 + p * 4096))
            a("s_add_u32 s18, s24, 0x%x" % (p * 1024))
            a("buffer_load_dwordx4 v%d, s[%d:%d], s18 offen lds" % (VW, R_W, R_W + 3))
        vm.issue(("c", c), 7)

    uid = [0]

    def stageB(c):
        cb = c - 8
        slot = (c % 5) * SLOT
        if OPT["rot"]:
            a("s_add_u32 s22, s%d, %d" % (S_J, cb))
            a("s_and_b32 s22, s22, 3")
            a("s_lshl_b32 s22, s22, 8")
        else:
            a("s_mov_b32 s22, %d" % (cb << 8))
        a("s_add_u32 s23, s15, s22")
        a("s_add_u32 s24, s16, s22")
        for m in range(4):
            a("s_add_u32 m0, s14, 0x%x" % (slot + m * 4096))
            a("s_add_u32 s18, s23, 0x%x" % (m * 512 * 1024))
            a("buffer_load_dwordx4 v%d, s[%d:%d], s18 offen lds" % (VB, R_XB, R_XB + 3))
        for m in range(4):
            a("s_add_u32 m0, s14, 0x%x" % (slot + 16384 + m * 4096))
            a("s_add_u32 s18, s24, 0x%x" % ((m & 1) * 16384))
            R = R_DR if m < 2 else R_DI
            if m == 2:
                uid[0] += 1
                L1, L2 = "K1_SP%d" % uid[0], "K1_SPE%d" % uid[0]
                a("s_cmp_eq_u32 s17, 0")
                a("s_cbranch_scc1 %s" % L1)
                a("buffer_load_dwordx4 v%d, s[%d:%d], s18 offen lds" % (VD, R, R + 3))
                a("s_branch %s" % L2)
                a.label(L1)
                a("s_mov_b64 exec, 0xffff")
                a("s_add_u32 s19, s22, 0x%x" % (256 * 1024))
                a("buffer_load_dwordx4 v%d, s[%d:%d], s19 offen lds" % (VD, R_DR, R_DR + 3))
                a("s_not_b64 exec, exec")
                a("buffer_load_dwordx4 v%d, s[%d:%d], s18 offen lds" % (VD, R, R + 3))
                a("s_mov_b64 exec, -1")
                a.label(L2)
            else:
                a("buffer_load_dwordx4 v%d, s[%d:%d], s18 offen lds" % (VD, R, R + 3))
        vm.issue(("c", c), 8)

    for c in range(2):
        stageA(c)
        st()
    a("s_lshl_b32 s18, s3, 2")
    a("v_add_u32 v%d, s18, v%d" % (t1, t0))
    a("v_and_b32 v%d, 15, v0" % t2)
    a("v_xor_b32 v%d, v%d, v%d" % (t1, t1, t2))
    a("v_lshlrev_b32 v%d, 4, v%d" % (t1, t1))
    a("v_lshl_or_b32 v%d, v%d, 15, v%d" % (VB, t0, t1))
    a("v_lshl_or_b32 v%d, v%d, 10, v%d" % (VD, t0, t1))
    a("s_lshl_b32 s15, s3, 7")
    a("s_add_u32 s15, s15, s%d" % S_S2)
    a("s_lshl_b32 s15, s15, 10")
    a("s_lshl_b32 s16, s%d, 5" % S_J)
    a("s_lshl_b32 s18, s3, 2")
    a("s_add_u32 s16, s16, s18")
    a("s_lshl_b32 s16, s16, 10")
    a("s_or_b32 s17, s%d, s3" % S_J)
    for c in range(2, 5):
        stageA(c)
        st()
    A1, A2 = 20, 24
    WF = 28
    VI = 36
    FF = 40
    wphi_frags(a, vm, 0, WF, A1, A2, 60, S_HP)
    a("v_mov_b32 v%d, v60" % VI)
    a("s_lshr_b32 s18, s3, 1")
    a("s_lshl_b32 s18, s18, 5")
    a("v_add_u32 v%d, s18, v%d" % (t1, VI))
    a("v_lshrrev_b32 v%d, 5, v0" % t2)
    a("v_lshlrev_b32 v%d, 4, v%d" % (t2, t2))
    a("v_lshl_or_b32 v%d, v%d, 17, v%d" % (13, t1, t2))
    a("v_subrev_u32 v%d, 32, v%d" % (14, t1))
    a("v_max_i32 v%d, 0, v%d" % (14, 14))
    a("v_lshl_or_b32 v%d, v%d, 17, v%d" % (14, 14, t2))
    a("v_mov_b32 v%d, v%d" % (15, t1))
    for kk in range(4):
        a("buffer_load_dwordx4 v[%d:%d], v13, s[%d:%d], 0 offen offset:%d" % (FF + 4 * kk, FF + 4 * kk + 3, R_CR, R_CR + 3, 32 * kk))
    for kk in range(4):
        a("buffer_load_dwordx4 v[%d:%d], v14, s[%d:%d], 0 offen offset:%d" % (FF + 16 + 4 * kk, FF + 16 + 4 * kk + 3, R_CI, R_CI + 3, 32 * kk))
    vm.issue("f", 8)

    st()
    for c in range(8):
        a("s_waitcnt vmcnt(%d)" % vm.wait_n(("c", c)))
        if c in (0, 1, 4, 7):
            st()
        a("s_barrier")
        if c >= 1:
            if c + 4 < 8:
                stageA(c + 4)
            else:
                stageB(c + 4)
    wphi_finish(a, WF, A1, A2, VI)
    a("v_cmp_lt_u32 vcc, 32, v15")
    for i in range(16):
        a("v_cndmask_b32 v%d, v%d, v%d, vcc" % (FF + i, FF + i, FF + 16 + i))
    BA, BB = 72, 80
    a("v_and_b32 v%d, 3, v%d" % (t1, VI))
    a("v_and_b32 v%d, 4, v%d" % (t2, VI))
    a("v_lshl_or_b32 v%d, v%d, 1, v%d" % (t1, t2, t1))
    a("v_and_b32 v%d, 8, v%d" % (t2, VI))
    a("v_lshrrev_b32 v%d, 1, v%d" % (t2, t2))
    a("v_or_b32 v%d, v%d, v%d" % (t1, t1, t2))
    a("v_and_b32 v%d, 16, v%d" % (t2, VI))
    a("v_or_b32 v%d, v%d, v%d" % (t1, t1, t2))
    a("v_lshrrev_b32 v%d, 5, v0" % t0)
    a("v_and_b32 v%d, 15, v%d" % (t2, t1))
    a("v_xor_b32 v%d, v%d, v%d" % (t2, t2, t0))
    a("v_lshlrev_b32 v%d, 4, v%d" % (t2, t2))
    a("v_lshl_or_b32 v%d, v%d, 8, v%d" % (t2, t1, t2))
    a("s_lshr_b32 s18, s3, 1")
    a("s_lshl_b32 s18, s18, 13")
    a("s_add_u32 s18, s18, 0x%x" % (3 * SLOT))
    a("v_add_u32 v%d, s18, v%d" % (BA, t2))
    a("s_and_b32 s18, s3, 1")
    a("s_lshl_b32 s18, s18, 13")
    a("s_add_u32 s18, s18, 0x%x" % (3 * SLOT + 16384))
    a("v_add_u32 v%d, s18, v%d" % (BB, t2))
    for k in range(1, 8):
        a("v_xor_b32 v%d, 0x%x, v%d" % (BA + k, 32 * k, BA))
        a("v_xor_b32 v%d, 0x%x, v%d" % (BB + k, 32 * k, BB))
    ACU = 96
    for r in range(16):
        a("v_mov_b32 v%d, 0" % (ACU + r))
    a("s_barrier")
    st()
    QF = 112
    DP = 120
    PH = 136
    T = 152
    a("s_lshl_b32 s18, s3, 12")
    a("s_add_u32 s18, s18, 0x%x" % (2 * SLOT))
    a("v_lshlrev_b32 v%d, 4, v0" % T)
    a("v_add_u32 v%d, s18, v%d" % (T + 1, T))
    a("ds_read_b128 v[%d:%d], v%d" % (QF, QF + 3, T + 1))
    a("ds_read_b128 v[%d:%d], v%d offset:1024" % (QF + 4, QF + 7, T + 1))
    a("s_waitcnt lgkmcnt(1)")
    a("v_mfma_f32_32x32x16_bf16 v[%d:%d], v[%d:%d], v[%d:%d], 0" % (DP, DP + 15, A1, A1 + 3, QF, QF + 3))
    a("s_waitcnt lgkmcnt(0)")
    a("v_mfma_f32_32x32x16_bf16 v[%d:%d], v[%d:%d], v[%d:%d], v[%d:%d]" % (DP, DP + 15, A2, A2 + 3, QF + 4, QF + 7, DP, DP + 15))
    softmax_units(a, DP, T + 2, PH)
    a("s_lshl_b32 s18, s%d, 2" % S_RT)
    a("s_add_u32 s18, s18, s3")
    a("s_lshl_b32 s18, s18, 16")
    a("s_lshl_b32 s19, s%d, 12" % S_HP)
    a("s_add_u32 s18, s18, s19")
    a("s_add_u32 s18, s18, 0x%x" % WS_PHI)
    for u in range(4):
        a("buffer_store_dwordx4 v[%d:%d], v%d, s[%d:%d], s18 offen offset:%d" % (PH + 4 * u, PH + 4 * u + 3, T, R_WS, R_WS + 3, 1024 * u))
    vm.issue("phi", 4)
    st()
    a("s_waitcnt vmcnt(%d)" % vm.wait_n(("c", 9)))
    st()
    a("s_barrier")
    st()
    BF = 160
    NB = 6
    DIST = 4

    def breads(gs):
        c = 8 + gs // 8
        k = gs % 8
        off = (SLOT if c in (9, 11) else 0)
        b = BF + (gs % NB) * 8
        a("ds_read_b128 v[%d:%d], v%d offset:%d" % (b, b + 3, BA + k, off))
        a("ds_read_b128 v[%d:%d], v%d offset:%d" % (b + 4, b + 7, BB + k, off))

    def bmf(gs):
        b = BF + (gs % NB) * 8
        a("v_mfma_f32_32x32x16_bf16 v[%d:%d], v[%d:%d], v[%d:%d], v[%d:%d]" % (ACU, ACU + 15, b, b + 3, b + 4, b + 7, ACU, ACU + 15))

    for half in range(2):
        g0 = 16 * half
        if half == 1:
            a("s_waitcnt vmcnt(%d)" % vm.wait_n(("c", 11)))
            st()
            a("s_barrier")
            st()
            for k in range(8):
                a("v_subrev_u32 v%d, 0x%x, v%d" % (BA + k, 3 * SLOT, BA + k))
                a("v_subrev_u32 v%d, 0x%x, v%d" % (BB + k, 3 * SLOT, BB + k))
        for g in range(g0, g0 + DIST):
            breads(g)
        for g in range(g0, g0 + 16):
            after = min(g0 + 15, g + DIST - 1) - g
            a("s_waitcnt lgkmcnt(%d)" % (2 * after))
            bmf(g)
            if g + DIST < g0 + 16:
                breads(g + DIST)
    st()
    UF = 112
    for d in range(8):
        a("v_cvt_pk_bf16_f32 v%d, v%d, v%d" % (UF + d, ACU + 2 * d, ACU + 2 * d + 1))
    a("s_lshl_b32 s18, s3, 11")
    a("s_add_u32 s18, s18, 0x%x" % (3 * SLOT))
    a("v_add_u32 v%d, s18, v%d" % (T + 1, T))
    a("ds_write_b128 v%d, v[%d:%d]" % (T + 1, UF, UF + 3))
    a("ds_write_b128 v%d, v[%d:%d] offset:1024" % (T + 1, UF + 4, UF + 7))
    a("s_xor_b32 s18, s3, 2")
    a("s_lshl_b32 s18, s18, 11")
    a("s_add_u32 s18, s18, 0x%x" % (3 * SLOT))
    a("v_add_u32 v%d, s18, v%d" % (T + 2, T))
    a("s_waitcnt lgkmcnt(0)")
    a("s_barrier")
    a("ds_read_b128 v[%d:%d], v%d" % (UF + 8, UF + 11, T + 2))
    a("ds_read_b128 v[%d:%d], v%d offset:1024" % (UF + 12, UF + 15, T + 2))
    DH = 120 + 16
    a("s_lshr_b32 s18, s3, 1")
    a("s_cmp_eq_u32 s18, 0")
    a("s_cbranch_scc1 K1_SA0")
    for i in range(8):
        a("v_swap_b32 v%d, v%d" % (FF + i, FF + 8 + i))
    a.label("K1_SA0")
    a("v_mfma_f32_32x32x16_bf16 v[%d:%d], v[%d:%d], v[%d:%d], 0" % (DH, DH + 15, UF, UF + 3, FF, FF + 3))
    a("v_mfma_f32_32x32x16_bf16 v[%d:%d], v[%d:%d], v[%d:%d], v[%d:%d]" % (DH, DH + 15, UF + 4, UF + 7, FF + 4, FF + 7, DH, DH + 15))
    a("s_waitcnt lgkmcnt(1)")
    a("v_mfma_f32_32x32x16_bf16 v[%d:%d], v[%d:%d], v[%d:%d], v[%d:%d]" % (DH, DH + 15, UF + 8, UF + 11, FF + 8, FF + 11, DH, DH + 15))
    a("s_waitcnt lgkmcnt(0)")
    a("v_mfma_f32_32x32x16_bf16 v[%d:%d], v[%d:%d], v[%d:%d], v[%d:%d]" % (DH, DH + 15, UF + 12, UF + 15, FF + 12, FF + 15, DH, DH + 15))
    HP = 112
    for d in range(8):
        a("v_cvt_pk_bf16_f32 v%d, v%d, v%d" % (HP + d, DH + 2 * d, DH + 2 * d + 1))
    a("v_lshrrev_b32 v%d, 5, v0" % t0)
    a("v_lshlrev_b32 v%d, 4, v%d" % (t0, t0))
    a("v_lshl_or_b32 v%d, v15, 10, v%d" % (t0, t0))
    a("s_lshl_b32 s18, s%d, 16" % S_S2)
    a("s_lshl_b32 s19, s%d, 7" % S_J)
    a("s_add_u32 s18, s18, s19")
    a("s_and_b32 s19, s3, 1")
    a("s_lshl_b32 s19, s19, 6")
    a("s_add_u32 s18, s18, s19")
    a("s_add_u32 s18, s18, 0x%x" % WS_H)
    a("buffer_store_dwordx4 v[%d:%d], v%d, s[%d:%d], s18 offen" % (HP, HP + 3, t0, R_WS, R_WS + 3))
    a("buffer_store_dwordx4 v[%d:%d], v%d, s[%d:%d], s18 offen offset:32" % (HP + 4, HP + 7, t0, R_WS, R_WS + 3))
    dbgst(a, 4)
    if STAMP:
        st()
        a("s_waitcnt vmcnt(0)")
        st()
        st.flush(26, t0)
    a.label("K1_END")
    a("s_endpgm")


def zero_kv(a, TT, VZ, S_HP):
    base = (TT + 3) & ~3
    for i in range(4):
        a("v_mov_b32 v%d, 0" % (base + i))
    a("v_lshlrev_b32 v%d, 4, v0" % (base + 4))
    a("s_lshl_b32 s18, s%d, 12" % S_HP)
    for i in range(4):
        a("buffer_store_dwordx4 v[%d:%d], v%d, s[%d:%d], s18 offen offset:%d sc1" % (base, base + 3, base + 4, R_WS, R_WS + 3, 1024 * i))
    a("s_lshl_b32 s18, s%d, 8" % S_HP)
    a("s_add_u32 s18, s18, 0x%x" % WS_Z)
    a("s_mov_b64 exec, 0xffff")
    a("buffer_store_dwordx4 v[%d:%d], v%d, s[%d:%d], s18 offen sc1" % (base, base + 3, base + 4, R_WS, R_WS + 3))
    a("s_mov_b64 exec, -1")


def kd(name, vgpr):
    return """.p2align 6
.amdhsa_kernel %s
  .amdhsa_next_free_vgpr %d
  .amdhsa_next_free_sgpr 102
  .amdhsa_accum_offset %d
  .amdhsa_group_segment_fixed_size 0
  .amdhsa_kernarg_size 96
  .amdhsa_user_sgpr_count 2
  .amdhsa_user_sgpr_kernarg_segment_ptr 1
  .amdhsa_system_sgpr_workgroup_id_x 1
.end_amdhsa_kernel
""" % (name, vgpr, vgpr)


def main():
    out = sys.argv[1] if len(sys.argv) > 1 else "cdna_kernels/%s.s" % NAME
    only1 = "--k1" in sys.argv
    global STAMP
    if "--dbgst" in sys.argv:
        import gen
        gen.DBGST = True
        globals()["DBGST"] = True
    for arg in sys.argv:
        if arg.startswith("--opt="):
            import gen
            for kv in arg[6:].split(","):
                k_, v_ = kv.split("=")
                gen.OPT[k_] = int(v_)
                OPT[k_] = int(v_)
    for arg in sys.argv:
        if arg.startswith("--stsfx="):
            import gen
            gen.STSFX = arg[8:].replace("+", " ")
    if "--stamp" in sys.argv:
        STAMP = True
        import gen
        gen.STAMP = True
    hdr = open("cdna_kernels/%s.s.ref" % NAME).read().split("; Override launch geometry")[0]
    s = hdr
    s += "; @launch kernel=k1_kernel grid=(256,1,1) block=(512,1,1) lds=163840\n"
    if not only1:
        s += "; @launch kernel=k2_kernel grid=(256,1,1) block=(512,1,1) lds=163840\n"
    s += '.amdgcn_target "amdgcn-amd-amdhsa--gfx950"\n.text\n'
    a = Asm()
    if OPT["v"] == 2:
        from gen1 import gen_k1 as g1
        g1(a)
    else:
        gen_k1(a)
    s += a.text()
    if not only1:
        from gen2 import gen_k2
        b = Asm()
        gen_k2(b)
        s += b.text()
    s += "K_TEXT_END:\n"
    s += '.section .rodata,"a"\n'
    s += kd("k1_kernel", 256)
    if not only1:
        s += kd("k2_kernel", 256)
    open(out, "w").write(s)
    print("wrote", out, len(s), "bytes; k1 instrs", a.ninstr)


if __name__ == "__main__":
    main()
```

```python
from gen import *
import gen


def gen_k1(a):
    OPT = gen.OPT
    NA = OPT.get("na", 8)
    K = "k1_kernel"
    a.raw(".globl %s\n.p2align 8\n.type %s,@function\n%s:" % (K, K, K))
    a("s_cmp_ge_u32 s2, 256")
    a("s_cbranch_scc1 K1_END")
    load_ptrs(a)
    a("s_getpc_b64 s[12:13]")
    a.raw("K1_PC:")
    a("v_lshlrev_b32 v2, 7, v0")
    a("v_cmp_gt_u32 vcc, K_TEXT_END-K1_PC, v2")
    a("s_and_saveexec_b64 s[14:15], vcc")
    a("s_cbranch_execz K1_NOPF")
    a("global_load_dword v254, v2, s[12:13]")
    a.label("K1_NOPF")
    a("s_mov_b64 exec, -1")
    a("v_lshrrev_b32 v1, 6, v0")
    a("v_and_b32 v0, 63, v0")
    a("v_readfirstlane_b32 s3, v1")
    a("s_and_b32 s4, s2, 7")
    a("s_lshr_b32 s5, s2, 3")
    a("s_lshr_b32 s6, s5, 3")
    a("s_and_b32 s7, s5, 7")
    a("s_lshr_b32 s8, s4, 1")
    a("s_lshl_b32 s8, s8, 2")
    a("s_add_u32 s8, s8, s6")
    a("s_and_b32 s9, s4, 1")
    a("s_lshl_b32 s9, s9, 3")
    a("s_add_u32 s9, s9, s7")
    a("s_lshl_b32 s10, s4, 2")
    a("s_add_u32 s10, s10, s6")
    a("s_mov_b32 s26, s3")
    a("s_mov_b32 s28, 0x%x" % LOG2E)
    a("s_mov_b32 s29, 0x%x" % NLOG2E)
    a("s_cmp_lt_u32 s3, 4")
    a("s_cbranch_scc1 K1_COMPUTE")
    S_RT, S_HP, S_S2, S_J = 8, 9, 10, 7

    def srd_const(d, nbytes):
        a("s_mov_b32 s%d, 0x%x" % (d + 2, nbytes))
        a("s_mov_b32 s%d, 0x00020000" % (d + 3))

    def srd_base(d, lo):
        a("s_mov_b32 s%d, s%d" % (d, lo))
        a("s_mov_b32 s%d, s%d" % (d + 1, lo + 1))

    vm = VMQ()
    st = Stamper(a, 250, 0)
    a("s_sub_u32 s3, s3, 4")
    VX, VW, VB, VD = 1, 2, 3, 4
    t0, t1, t2 = 10, 11, 12
    a("s_and_b32 s18, s3, 1")
    a("s_lshl_b32 s18, s18, 2")
    a("v_lshrrev_b32 v%d, 4, v0" % t0)
    a("v_add_u32 v%d, s18, v%d" % (t1, t0))
    a("v_and_b32 v%d, 7, v0" % t2)
    a("v_xor_b32 v%d, v%d, v%d" % (t1, t1, t2))
    a("v_lshlrev_b32 v%d, 4, v%d" % (t1, t1))
    a("v_lshrrev_b32 v%d, 3, v0" % t2)
    a("v_lshl_or_b32 v%d, v%d, 10, v%d" % (VX, t2, t1))
    a("v_lshrrev_b32 v%d, 2, v0" % t1)
    a("v_mul_u32_u24 v%d, 0xc00, v%d" % (t1, t1))
    a("v_and_b32 v%d, 3, v0" % t2)
    a("v_lshl_or_b32 v%d, v%d, 4, v%d" % (VW, t2, t1))
    a("s_lshl_b32 s12, s%d, 17" % S_RT)
    a("s_lshl_b32 s18, s3, 13")
    a("s_add_u32 s12, s12, s18")
    a("s_mul_i32 s13, s3, 0xc000")
    a("s_lshl_b32 s18, s%d, 6" % S_HP)
    a("s_add_u32 s13, s13, s18")
    a("s_lshl_b32 s14, s3, 10")
    srd_const(R_X, 2048 * 1024)
    srd_const(R_W, 512 * 3072)
    a("s_waitcnt lgkmcnt(0)")
    srd_base(R_X, P_X)
    srd_base(R_W, P_W)
    st()

    def stageA(c):
        slot = (c % 5) * SLOT
        if OPT["xrot"]:
            a("s_add_u32 s22, s4, %d" % (c % 8))
            a("s_and_b32 s22, s22, 7")
            a("s_lshl_b32 s23, s22, 7")
            a("s_add_u32 s23, s23, s12")
            a("s_mul_i32 s24, s22, 0x30000")
            a("s_add_u32 s24, s24, s13")
            xb, xo, wb, wo_ = 23, 0, 24, 0
        else:
            xb, xo, wb, wo_ = 12, (c % 8) * 128, 13, (c % 8) * 0x30000
        for m in range(4):
            a("s_add_u32 m0, s14, 0x%x" % (slot + m * 4096))
            a("s_add_u32 s18, s%d, 0x%x" % (xb, xo + m * 32768))
            a("buffer_load_dwordx4 v%d, s[%d:%d], s18 offen lds" % (VX, R_X, R_X + 3))
        for p in range(3):
            a("s_add_u32 m0, s14, 0x%x" % (slot + 16384 + p * 4096))
            a("s_add_u32 s18, s%d, 0x%x" % (wb, wo_ + p * 1024))
            a("buffer_load_dwordx4 v%d, s[%d:%d], s18 offen lds" % (VW, R_W, R_W + 3))
        vm.issue(("c", c), 7)

    uid = [0]

    def stageB(c):
        cb = c - NA
        slot = (c % 5) * SLOT
        if OPT["xrot"]:
            a("s_add_u32 s22, s4, %d" % cb)
            a("s_and_b32 s22, s22, 3")
            a("s_lshl_b32 s22, s22, 8")
        else:
            a("s_mov_b32 s22, %d" % (cb * 256))
        a("s_add_u32 s23, s15, s22")
        a("s_add_u32 s24, s16, s22")
        for m in range(4):
            a("s_add_u32 m0, s14, 0x%x" % (slot + m * 4096))
            a("s_add_u32 s18, s23, 0x%x" % (m * 512 * 1024))
            a("buffer_load_dwordx4 v%d, s[%d:%d], s18 offen lds" % (VB, R_XB, R_XB + 3))
        for m in range(4):
            a("s_add_u32 m0, s14, 0x%x" % (slot + 16384 + m * 4096))
            a("s_add_u32 s18, s24, 0x%x" % ((m & 1) * 16384))
            R = R_DR if m < 2 else R_DI
            if m == 2:
                uid[0] += 1
                L1, L2 = "K1_SP%d" % uid[0], "K1_SPE%d" % uid[0]
                a("s_cmp_eq_u32 s17, 0")
                a("s_cbranch_scc1 %s" % L1)
                a("buffer_load_dwordx4 v%d, s[%d:%d], s18 offen lds" % (VD, R, R + 3))
                a("s_branch %s" % L2)
                a.label(L1)
                a("s_mov_b64 exec, 0xffff")
                a("s_add_u32 s19, s22, 0x%x" % (256 * 1024))
                a("buffer_load_dwordx4 v%d, s[%d:%d], s19 offen lds" % (VD, R_DR, R_DR + 3))
                a("s_not_b64 exec, exec")
                a("buffer_load_dwordx4 v%d, s[%d:%d], s18 offen lds" % (VD, R, R + 3))
                a("s_mov_b64 exec, -1")
                a.label(L2)
            else:
                a("buffer_load_dwordx4 v%d, s[%d:%d], s18 offen lds" % (VD, R, R + 3))
        vm.issue(("c", c), 8)

    def stage(c):
        if OPT.get("nodma"):
            vm.issue(("c", c), 0)
            vm.q.append(("c", c))
            a("s_nop 0")
            return
        if c < NA:
            stageA(c)
        elif c < NA + 4:
            stageB(c)

    LA = OPT["la"]
    stage(0)
    st()
    stage(1)
    st()
    srd(a, R_XB, P_XB, 2048 * 1024)
    srd(a, R_DR, P_DR, 512 * 1024)
    srd(a, R_DI, P_DI, 512 * 1024)
    srd(a, R_WS, P_WS, WS_SIZE)
    srd(a, R_CR, P_CR, 2048 * 4096)
    srd(a, R_CI, P_CI, 2048 * 4096)
    a("s_lshl_b32 s18, s3, 2")
    a("v_add_u32 v%d, s18, v%d" % (t1, t0))
    a("v_and_b32 v%d, 15, v0" % t2)
    a("v_xor_b32 v%d, v%d, v%d" % (t1, t1, t2))
    a("v_lshlrev_b32 v%d, 4, v%d" % (t1, t1))
    a("v_lshl_or_b32 v%d, v%d, 15, v%d" % (VB, t0, t1))
    a("v_lshl_or_b32 v%d, v%d, 10, v%d" % (VD, t0, t1))
    a("s_lshl_b32 s15, s3, 7")
    a("s_add_u32 s15, s15, s%d" % S_S2)
    a("s_lshl_b32 s15, s15, 10")
    a("s_lshl_b32 s16, s%d, 5" % S_J)
    a("s_lshl_b32 s18, s3, 2")
    a("s_add_u32 s16, s16, s18")
    a("s_lshl_b32 s16, s16, 10")
    a("s_or_b32 s17, s%d, s3" % S_J)
    for c in range(2, LA + 1):
        stage(c)
        st()
    VI = 36
    FF = 40
    BA, BB = 72, 80
    ACU = 96
    FBASE = 2 * SLOT + 8192

    A1, A2 = 20, 24
    WF = 28

    def late_setup():
        srd(a, R_WP, P_WP, 32 * 512)
        wphi_frags(a, vm, 0, WF, A1, A2, 60, S_HP)
        a("v_and_b32 v%d, 31, v0" % VI)
        a("s_lshr_b32 s18, s3, 1")
        a("s_lshl_b32 s18, s18, 5")
        a("v_add_u32 v%d, s18, v%d" % (15, VI))
        a("v_lshrrev_b32 v%d, 3, v0" % t2)
        a("v_and_b32 v%d, 7, v0" % t1)
        a("v_xor_b32 v%d, v%d, v%d" % (t1, t1, t2))
        a("v_lshlrev_b32 v%d, 4, v%d" % (t1, t1))
        a("v_lshl_or_b32 v%d, v%d, 17, v%d" % (13, t2, t1))
        a("v_lshrrev_b32 v%d, 5, v0" % t2)
        a("v_and_b32 v%d, 7, v15" % t1)
        a("v_xor_b32 v%d, v%d, v%d" % (t1, t1, t2))
        a("v_lshlrev_b32 v%d, 4, v%d" % (t1, t1))
        a("v_lshl_or_b32 v%d, v15, 7, v%d" % (14, t1))
        a("v_add_u32 v14, 0x%x, v14" % FBASE)
        a("v_and_b32 v%d, 3, v%d" % (t1, VI))
        a("v_and_b32 v%d, 4, v%d" % (t2, VI))
        a("v_lshl_or_b32 v%d, v%d, 1, v%d" % (t1, t2, t1))
        a("v_and_b32 v%d, 8, v%d" % (t2, VI))
        a("v_lshrrev_b32 v%d, 1, v%d" % (t2, t2))
        a("v_or_b32 v%d, v%d, v%d" % (t1, t1, t2))
        a("v_and_b32 v%d, 16, v%d" % (t2, VI))
        a("v_or_b32 v%d, v%d, v%d" % (t1, t1, t2))
        a("v_lshrrev_b32 v%d, 5, v0" % t0)
        a("v_and_b32 v%d, 15, v%d" % (t2, t1))
        a("v_xor_b32 v%d, v%d, v%d" % (t2, t2, t0))
        a("v_lshlrev_b32 v%d, 4, v%d" % (t2, t2))
        a("v_lshl_or_b32 v%d, v%d, 8, v%d" % (t2, t1, t2))
        a("s_lshr_b32 s18, s3, 1")
        a("s_lshl_b32 s18, s18, 13")
        a("s_add_u32 s18, s18, 0x%x" % (3 * SLOT))
        a("v_add_u32 v%d, s18, v%d" % (BA, t2))
        a("s_and_b32 s18, s3, 1")
        a("s_lshl_b32 s18, s18, 13")
        a("s_add_u32 s18, s18, 0x%x" % (3 * SLOT + 16384))
        a("v_add_u32 v%d, s18, v%d" % (BB, t2))
        for k in range(1, 8):
            a("v_xor_b32 v%d, 0x%x, v%d" % (BA + k, 32 * k, BA))
            a("v_xor_b32 v%d, 0x%x, v%d" % (BB + k, 32 * k, BB))
        for r in range(16):
            a("v_mov_b32 v%d, 0" % (ACU + r))

    issued = LA + 1
    for c in range(NA):
        a("s_waitcnt vmcnt(%d)" % vm.wait_n(("c", c)))
        if c in (0, 1, 4, 7) or NA != 8:
            st()
        a("s_barrier")
        lim = min(c + LA + 1, c + 4, NA + 3) if c < NA - 1 else NA + 3
        while issued <= lim:
            stage(issued)
            issued += 1
        if c == 1:
            late_setup()
    assert issued == NA + 4
    wphi_finish(a, WF, A1, A2, VI)
    T = 152
    a("v_lshlrev_b32 v%d, 4, v0" % T)
    a("s_lshl_b32 s18, s3, 12")
    a("s_add_u32 s18, s18, 0x%x" % (2 * SLOT))
    a("v_add_u32 v%d, s18, v%d" % (T + 1, T))
    a("s_waitcnt vmcnt(%d)" % vm.wait_n(("c", NA + 1)))
    st()
    a("s_barrier")
    st()
    BF = 160
    NB = 6
    DIST = 4
    QF = 112
    DP = 120
    PH = 136
    TQ = 208

    def breads(gs):
        c = NA + gs // 8
        k = gs % 8
        off = (SLOT if c in (NA + 1, NA + 3) else 0)
        b = BF + (gs % NB) * 8
        a("ds_read_b128 v[%d:%d], v%d offset:%d" % (b, b + 3, BA + k, off))
        a("ds_read_b128 v[%d:%d], v%d offset:%d" % (b + 4, b + 7, BB + k, off))

    def bmf(gs):
        b = BF + (gs % NB) * 8
        a("v_mfma_f32_32x32x16_bf16 v[%d:%d], v[%d:%d], v[%d:%d], v[%d:%d]" % (ACU, ACU + 15, b, b + 3, b + 4, b + 7, ACU, ACU + 15))

    a("ds_read_b128 v[%d:%d], v%d" % (QF, QF + 3, T + 1))
    a("ds_read_b128 v[%d:%d], v%d offset:1024" % (QF + 4, QF + 7, T + 1))
    for g in range(DIST):
        breads(g)
    a("s_waitcnt lgkmcnt(%d)" % (2 * DIST + 1))
    a("v_mfma_f32_32x32x16_bf16 v[%d:%d], v[%d:%d], v[%d:%d], 0" % (DP, DP + 15, A1, A1 + 3, QF, QF + 3))
    a("s_waitcnt lgkmcnt(%d)" % (2 * DIST))
    a("v_mfma_f32_32x32x16_bf16 v[%d:%d], v[%d:%d], v[%d:%d], v[%d:%d]" % (DP, DP + 15, A2, A2 + 3, QF + 4, QF + 7, DP, DP + 15))
    cap = []
    softmax_units(cap.append, DP, TQ, PH)
    HEAD = OPT["head"]
    per = (len(cap) + (16 - HEAD) - 1) // (16 - HEAD)
    pos = 0
    for g in range(16):
        after = min(15, g + DIST - 1) - g
        a("s_waitcnt lgkmcnt(%d)" % (2 * after))
        bmf(g)
        if g + DIST < 16:
            breads(g + DIST)
        if g >= HEAD:
            for ins in cap[pos:pos + per]:
                a(ins)
            pos += per
    for ins in cap[pos:]:
        a(ins)
    a("s_lshl_b32 s18, s%d, 2" % S_RT)
    a("s_add_u32 s18, s18, s3")
    a("s_lshl_b32 s18, s18, 16")
    a("s_lshl_b32 s19, s%d, 12" % S_HP)
    a("s_add_u32 s18, s18, s19")
    a("s_add_u32 s18, s18, 0x%x" % WS_PHI)
    sfx = (" " + gen.STSFX) if gen.STSFX else ""
    for u in range(4):
        a("buffer_store_dwordx4 v[%d:%d], v%d, s[%d:%d], s18 offen offset:%d%s" % (PH + 4 * u, PH + 4 * u + 3, T, R_WS, R_WS + 3, 1024 * u, sfx))
    vm.issue("phi", 4)
    for k in range(8):
        a("v_subrev_u32 v%d, 0x%x, v%d" % (BA + k, 3 * SLOT, BA + k))
        a("v_subrev_u32 v%d, 0x%x, v%d" % (BB + k, 3 * SLOT, BB + k))
    a("s_waitcnt vmcnt(%d)" % vm.wait_n(("c", NA + 3)))
    st()
    a("s_barrier")
    st()
    for g in range(16, 16 + DIST):
        breads(g)
    for u in range(2):
        a("s_lshl_b32 s18, s3, 11")
        a("s_add_u32 m0, s18, 0x%x" % (FBASE + 1024 * u))
        if u == 0:
            a("s_lshl_b32 s18, s3, 21")
            a("s_sub_u32 s19, s18, 0x400000")
            a("s_cmp_lt_u32 s3, 2")
            a("s_cbranch_scc1 K1_FR0")
            a("s_cmp_eq_u32 s3, 3")
            a("s_cbranch_scc1 K1_FI0")
            a("s_mov_b64 exec, 0xff")
            a("buffer_load_dwordx4 v13, s[%d:%d], s18 offen lds" % (R_CR, R_CR + 3))
            a("s_not_b64 exec, exec")
            a("buffer_load_dwordx4 v13, s[%d:%d], s19 offen lds" % (R_CI, R_CI + 3))
            a("s_mov_b64 exec, -1")
            a("s_branch K1_FE0")
            a.label("K1_FI0")
            a("buffer_load_dwordx4 v13, s[%d:%d], s19 offen lds" % (R_CI, R_CI + 3))
            a("s_branch K1_FE0")
            a.label("K1_FR0")
            a("buffer_load_dwordx4 v13, s[%d:%d], s18 offen lds" % (R_CR, R_CR + 3))
            a.label("K1_FE0")
        else:
            a("s_lshl_b32 s18, s3, 21")
            a("s_add_u32 s18, s18, 0x100000")
            a("s_sub_u32 s19, s18, 0x400000")
            a("s_cmp_lt_u32 s3, 2")
            a("s_cbranch_scc1 K1_FR1")
            a("buffer_load_dwordx4 v13, s[%d:%d], s19 offen lds" % (R_CI, R_CI + 3))
            a("s_branch K1_FE1")
            a.label("K1_FR1")
            a("buffer_load_dwordx4 v13, s[%d:%d], s18 offen lds" % (R_CR, R_CR + 3))
            a.label("K1_FE1")
    vm.issue("f", 2)
    for g in range(16, 32):
        after = min(31, g + DIST - 1) - g
        a("s_waitcnt lgkmcnt(%d)" % (2 * after))
        bmf(g)
        if g + DIST < 32:
            breads(g + DIST)
    st()
    UF = 112
    for d in range(8):
        a("v_cvt_pk_bf16_f32 v%d, v%d, v%d" % (UF + d, ACU + 2 * d, ACU + 2 * d + 1))
    a("s_lshl_b32 s18, s3, 11")
    a("s_add_u32 s18, s18, 0x%x" % (3 * SLOT))
    a("v_add_u32 v%d, s18, v%d" % (T + 1, T))
    a("ds_write_b128 v%d, v[%d:%d]" % (T + 1, UF, UF + 3))
    a("ds_write_b128 v%d, v[%d:%d] offset:1024" % (T + 1, UF + 4, UF + 7))
    a("s_xor_b32 s18, s3, 2")
    a("s_lshl_b32 s18, s18, 11")
    a("s_add_u32 s18, s18, 0x%x" % (3 * SLOT))
    a("v_add_u32 v%d, s18, v%d" % (T + 2, T))
    DH = 120 + 16
    a("s_lshr_b32 s18, s3, 1")
    a("s_lshl_b32 s18, s18, 6")
    a("v_xor_b32 v14, s18, v14")
    a("v_lshrrev_b32 v%d, 5, v0" % t0)
    a("v_lshlrev_b32 v%d, 4, v%d" % (t0, t0))
    a("v_lshl_or_b32 v%d, v15, 10, v%d" % (t0, t0))
    a("s_lshl_b32 s18, s%d, 16" % S_S2)
    a("s_lshl_b32 s19, s%d, 7" % S_J)
    a("s_add_u32 s18, s18, s19")
    a("s_and_b32 s19, s3, 1")
    a("s_lshl_b32 s19, s19, 6")
    a("s_add_u32 s18, s18, s19")
    a("s_add_u32 s18, s18, 0x%x" % WS_H)
    a("s_waitcnt vmcnt(0) lgkmcnt(0)")
    st()
    a("s_barrier")
    st()
    a("v_xor_b32 v13, 32, v14")
    a("v_xor_b32 v12, 64, v14")
    a("v_xor_b32 v11, 96, v14")
    a("ds_read_b128 v[%d:%d], v14" % (FF, FF + 3))
    a("ds_read_b128 v[%d:%d], v13" % (FF + 4, FF + 7))
    a("ds_read_b128 v[%d:%d], v%d" % (UF + 8, UF + 11, T + 2))
    a("ds_read_b128 v[%d:%d], v12" % (FF + 8, FF + 11))
    a("ds_read_b128 v[%d:%d], v%d offset:1024" % (UF + 12, UF + 15, T + 2))
    a("ds_read_b128 v[%d:%d], v11" % (FF + 12, FF + 15))
    a("s_waitcnt lgkmcnt(5)")
    a("v_mfma_f32_32x32x16_bf16 v[%d:%d], v[%d:%d], v[%d:%d], 0" % (DH, DH + 15, UF, UF + 3, FF, FF + 3))
    a("s_waitcnt lgkmcnt(4)")
    a("v_mfma_f32_32x32x16_bf16 v[%d:%d], v[%d:%d], v[%d:%d], v[%d:%d]" % (DH, DH + 15, UF + 4, UF + 7, FF + 4, FF + 7, DH, DH + 15))
    a("s_waitcnt lgkmcnt(2)")
    a("v_mfma_f32_32x32x16_bf16 v[%d:%d], v[%d:%d], v[%d:%d], v[%d:%d]" % (DH, DH + 15, UF + 8, UF + 11, FF + 8, FF + 11, DH, DH + 15))
    a("s_waitcnt lgkmcnt(0)")
    a("v_mfma_f32_32x32x16_bf16 v[%d:%d], v[%d:%d], v[%d:%d], v[%d:%d]" % (DH, DH + 15, UF + 12, UF + 15, FF + 12, FF + 15, DH, DH + 15))
    HP = 112
    for d in range(8):
        a("v_cvt_pk_bf16_f32 v%d, v%d, v%d" % (HP + d, DH + 2 * d, DH + 2 * d + 1))
    sfx = (" " + gen.STSFX) if gen.STSFX else ""
    a("buffer_store_dwordx4 v[%d:%d], v%d, s[%d:%d], s18 offen%s" % (HP, HP + 3, t0, R_WS, R_WS + 3, sfx))
    a("buffer_store_dwordx4 v[%d:%d], v%d, s[%d:%d], s18 offen offset:32%s" % (HP + 4, HP + 7, t0, R_WS, R_WS + 3, sfx))
    if gen.STAMP:
        st()
        a("s_waitcnt vmcnt(0)")
        st()
        st.flush(26, t0)
    a("s_endpgm")

    a.label("K1_COMPUTE")
    vm = VMQ()
    vm.issue("pf", 1)
    st = Stamper(a, 250, 0)
    LANE = 0
    XA = 2
    WQ = 14
    WV = 17
    A1, A2 = 20, 24
    I0, I1 = 28, 32
    VI = 36
    VF = 37
    VZ = 38
    ACQ, ACK, ACV = 40, 56, 72
    FR = 88
    T = 152
    QF = 200
    srd_const(R_WS, WS_SIZE)
    srd_const(R_WP, 32 * 512)
    a("v_mov_b32 v%d, 0" % VZ)
    a("s_or_b32 s14, s%d, s3" % S_RT)
    a("s_lshl_b32 s15, s%d, 3" % S_HP)
    a("s_waitcnt lgkmcnt(0)")
    for d, lo in ((R_WS, P_WS), (R_WP, P_WP)):
        srd_base(d, lo)
    st()
    TV, TSB, TD = T + 40, 76 + 4, 210
    if OPT["touch"]:
        touch_setup(a, TV, 64)
        touch_point(a, TV, 64, TD, 0, slots=(0,))
    a("s_add_u32 s16, s%d, s15" % P_DBG)
    a("s_addc_u32 s17, s%d, 0" % (P_DBG + 1))
    a("s_cmp_lg_u32 s14, 0")
    a("s_cbranch_scc1 K1_NOCLAIM")
    a("v_mov_b32 v%d, 1" % (T + 10))
    a("s_mov_b64 exec, 1")
    a("global_atomic_add v%d, v%d, v%d, s[16:17] sc0" % (T + 11, VZ, T + 10))
    a("s_mov_b64 exec, -1")
    a.label("K1_NOCLAIM")
    WF = T + 12
    wphi_frags(a, vm, LANE, WF, A1, A2, T + 20, S_HP)
    a("v_mov_b32 v%d, v%d" % (VI, T + 20))
    t0, t1, t2 = T + 24, T + 25, T + 26
    a("v_lshrrev_b32 v%d, 5, v0" % t0)
    a("s_lshl_b32 s18, s3, 5")
    a("v_add_u32 v%d, s18, v%d" % (t1, VI))
    a("v_lshrrev_b32 v%d, 1, v%d" % (t2, t1))
    a("v_and_b32 v%d, 7, v%d" % (t2, t2))
    a("v_xor_b32 v%d, v%d, v%d" % (t2, t2, t0))
    a("v_lshlrev_b32 v%d, 4, v%d" % (t2, t2))
    a("v_lshl_or_b32 v%d, v%d, 7, v%d" % (XA, t1, t2))
    for k in range(1, 4):
        a("v_xor_b32 v%d, 0x%x, v%d" % (XA + k, 32 * k, XA))
    for g in range(1, 3):
        for k in range(4):
            a("v_add_u32 v%d, 0x%x, v%d" % (XA + 4 * g + k, 65536 * g, XA + k))
    a("v_lshrrev_b32 v%d, 2, v0" % t1)
    a("v_and_b32 v%d, 3, v%d" % (t1, t1))
    a("v_lshl_or_b32 v%d, v%d, 3, v%d" % (t1, t0, t1))
    a("v_lshlrev_b32 v%d, 6, v%d" % (t1, t1))
    a("v_and_b32 v%d, 16, v0" % t2)
    a("v_lshl_or_b32 v%d, v%d, 1, v%d" % (t1, t2, t1))
    a("v_and_b32 v%d, 3, v0" % t2)
    a("v_lshl_or_b32 v%d, v%d, 3, v%d" % (WV, t2, t1))
    a("v_and_b32 v%d, 1, v0" % t2)
    a("v_lshl_or_b32 v%d, v%d, 4, v%d" % (WQ, t2, t1))
    a("v_and_b32 v%d, 2, v0" % t2)
    a("v_lshl_or_b32 v%d, v%d, 2, v%d" % (WQ, t2, WQ))
    for g in range(1, 3):
        a("v_add_u32 v%d, 0x%x, v%d" % (WQ + g, 65536 * g, WQ))
        a("v_add_u32 v%d, 0x%x, v%d" % (WV + g, 65536 * g, WV))
    a("v_lshlrev_b32 v%d, 3, v%d" % (t1, t0))
    a("v_sub_u32 v%d, v%d, v%d" % (t1, VI, t1))
    for ks, I in ((0, I0), (1, I1)):
        if ks:
            a("v_subrev_u32 v%d, 16, v%d" % (t1, t1))
        a("v_and_b32 v%d, 1, v%d" % (t2, t1))
        a("v_lshlrev_b32 v%d, 4, v%d" % (t2, t2))
        a("v_mov_b32 v%d, 0x3f80" % t0)
        a("v_lshlrev_b32 v%d, v%d, v%d" % (t2, t2, t0))
        a("v_ashrrev_i32 v%d, 1, v%d" % (t0, t1))
        for d in range(4):
            a("v_cmp_eq_u32 vcc, %d, v%d" % (d, t0))
            a("v_cndmask_b32 v%d, 0, v%d, vcc" % (I + d, t2))
    for r in range(48):
        a("v_mov_b32 v%d, 0" % (ACQ + r))
    a("v_lshlrev_b32 v%d, 4, v0" % T)

    def reads(g):
        if OPT.get("nocomp"):
            return
        c, k = g >> 2, g & 3
        slot = c % 5
        grp, off = slot >> 1, (slot & 1) * SLOT
        b = FR + (g & 3) * 16
        a("ds_read_b128 v[%d:%d], v%d offset:%d" % (b, b + 3, XA + 4 * grp + k, off))
        for p in range(3):
            areg = (WQ if p < 2 else WV) + grp
            for hf in range(2):
                o = off + 16384 + p * 4096 + (16 * k + 4 * hf) * 64
                d = b + 4 + p * 4 + hf * 2
                a("ds_read_b64_tr_b16 v[%d:%d], v%d offset:%d" % (d, d + 1, areg, o))

    def mfmas(g):
        if OPT.get("nocomp") or OPT.get("nomfma"):
            return
        b = FR + (g & 3) * 16
        a("v_mfma_f32_32x32x16_bf16 v[%d:%d], v[%d:%d], v[%d:%d], v[%d:%d]" % (ACQ, ACQ + 15, b + 4, b + 7, b, b + 3, ACQ, ACQ + 15))
        a("v_mfma_f32_32x32x16_bf16 v[%d:%d], v[%d:%d], v[%d:%d], v[%d:%d]" % (ACK, ACK + 15, b + 8, b + 11, b, b + 3, ACK, ACK + 15))
        a("v_mfma_f32_32x32x16_bf16 v[%d:%d], v[%d:%d], v[%d:%d], v[%d:%d]" % (ACV, ACV + 15, b, b + 3, b + 12, b + 15, ACV, ACV + 15))

    st()
    a("s_barrier")
    st()
    for g in range(3):
        reads(g)
    if OPT["touch"]:
        touch_point(a, TV, 64, TD, 1)
    for g in range(4 * NA):
        issued_after = min(4 * NA - 1, g + 2) - g
        a("s_waitcnt lgkmcnt(%d)" % (7 * issued_after))
        mfmas(g)
        if g + 3 < 4 * NA:
            if (g + 3) % 4 == 0:
                a("s_waitcnt lgkmcnt(0)")
                a("s_barrier")
            reads(g + 3)
            if (g + 3) % 4 == 0 and OPT["touch"]:
                touch_point(a, TV, 64, TD, (g + 3) // 4 + 1)
        if g == 12:
            a("s_waitcnt vmcnt(0)")
            wphi_finish(a, WF, A1, A2, VI)
            a("s_cmp_lg_u32 s14, 0")
            a("s_cbranch_scc1 K1_NOZERO")
            a("v_readfirstlane_b32 s19, v%d" % (T + 11))
            a("s_mov_b32 s20, 1")
            a("s_cmp_lg_u32 s19, 0")
            a("s_cbranch_scc1 K1_NOZERO")
            a("s_mov_b32 s20, 0")
            zero_kv(a, T + 30, VZ, S_HP)
            a.label("K1_NOZERO")
        if g == 20:
            a("s_cmp_lg_u32 s14, 0")
            a("s_cbranch_scc1 K1_NOFLAG")
            a("s_cmp_lg_u32 s20, 0")
            a("s_cbranch_scc1 K1_NOFLAG")
            a("s_waitcnt vmcnt(0)")
            a("v_mov_b32 v%d, 1" % (T + 10))
            a("s_mov_b64 exec, 1")
            a("global_atomic_add v%d, v%d, s[16:17] offset:4" % (VZ, T + 10))
            a("s_mov_b64 exec, -1")
            a.label("K1_NOFLAG")

    st()
    KF = FR + 8
    VFm = FR + 16
    DP = FR + 32
    PH = FR + 48
    slot2 = 2 * SLOT
    for d in range(8):
        a("v_cvt_pk_bf16_f32 v%d, v%d, v%d" % (QF + d, ACQ + 2 * d, ACQ + 2 * d + 1))
    a("s_lshl_b32 s18, s3, 12")
    a("s_add_u32 s18, s18, 0x%x" % slot2)
    a("v_add_u32 v%d, s18, v%d" % (T + 1, T))
    a("ds_write_b128 v%d, v[%d:%d]" % (T + 1, QF, QF + 3))
    a("ds_write_b128 v%d, v[%d:%d] offset:1024" % (T + 1, QF + 4, QF + 7))
    for d in range(8):
        a("v_cvt_pk_bf16_f32 v%d, v%d, v%d" % (KF + d, ACK + 2 * d, ACK + 2 * d + 1))
    a("v_mfma_f32_32x32x16_bf16 v[%d:%d], v[%d:%d], v[%d:%d], 0" % (DP, DP + 15, A1, A1 + 3, KF, KF + 3))
    a("v_mfma_f32_32x32x16_bf16 v[%d:%d], v[%d:%d], v[%d:%d], v[%d:%d]" % (DP, DP + 15, A2, A2 + 3, KF + 4, KF + 7, DP, DP + 15))
    a("global_load_dword v%d, v%d, s[16:17] offset:4 sc1" % (VF, VZ))
    a("s_waitcnt lgkmcnt(0)")
    st()
    a("s_barrier")
    st()
    for d in range(8):
        a("v_cvt_pk_bf16_f32 v%d, v%d, v%d" % (VFm + d, ACV + 2 * d, ACV + 2 * d + 1))
    AV0, AV1 = ACQ, ACQ + 8
    a("v_cmp_gt_u32 vcc, 16, v%d" % VI)
    a("v_mov_b32 v%d, 0x3f803f80" % (T + 1))
    for d in range(8):
        a("v_cndmask_b32 v%d, v%d, v%d, vcc" % (AV0 + d, T + 1, VFm + d))
        a("v_cndmask_b32 v%d, v%d, v%d, vcc" % (AV1 + d, VFm + d, T + 1))
    softmax_units(a, DP, T + 2, PH, mid=(lambda: a("s_barrier")) if OPT["xbpos"] == 0 else None)
    st()
    if OPT["xbpos"] == 1:
        a("s_barrier")
    st()
    for hd, D in ((0, ACK), (1, ACV)):
        p = PH + 8 * hd
        a("v_mfma_f32_32x32x16_bf16 v[%d:%d], v[%d:%d], v[%d:%d], 0" % (D, D + 15, p, p + 3, I0, I0 + 3))
        a("v_mfma_f32_32x32x16_bf16 v[%d:%d], v[%d:%d], v[%d:%d], v[%d:%d]" % (D, D + 15, p + 4, p + 7, I1, I1 + 3, D, D + 15))
    BK = FR
    for hd, D in ((0, ACK), (1, ACV)):
        for d in range(8):
            a("v_cvt_pk_bf16_f32 v%d, v%d, v%d" % (BK + 8 * hd + d, D + 2 * d, D + 2 * d + 1))
    KV0, KV1 = ACK, ACV
    for hd, D, AV in ((0, KV0, AV0), (1, KV1, AV1)):
        b = BK + 8 * hd
        a("v_mfma_f32_32x32x16_bf16 v[%d:%d], v[%d:%d], v[%d:%d], 0" % (D, D + 15, AV, AV + 3, b, b + 3))
        a("v_mfma_f32_32x32x16_bf16 v[%d:%d], v[%d:%d], v[%d:%d], v[%d:%d]" % (D, D + 15, AV + 4, AV + 7, b + 4, b + 7, D, D + 15))
    a("s_lshl_b32 s18, s3, 12")
    a("s_add_u32 s18, s18, 0x%x" % (slot2 + 16384))
    a("v_add_u32 v%d, s18, v%d" % (T + 1, T))
    a("s_lshl_b32 s18, s3, 8")
    a("s_add_u32 s18, s18, 0x%x" % slot2)
    a("v_lshlrev_b32 v%d, 2, v0" % (T + 26))
    a("v_add_u32 v%d, s18, v%d" % (T + 27, T + 26))
    a("v_cmp_gt_u32 vcc, 32, v0")
    a("ds_write_b128 v%d, v[%d:%d]" % (T + 1, KV0, KV0 + 3))
    a("ds_write_b128 v%d, v[%d:%d] offset:1024" % (T + 1, KV0 + 4, KV0 + 7))
    a("v_cndmask_b32 v%d, v%d, v%d, vcc" % (T + 28, KV1, KV0 + 8))
    a("ds_write_b128 v%d, v[%d:%d] offset:2048" % (T + 1, KV1 + 8, KV1 + 11))
    a("ds_write_b128 v%d, v[%d:%d] offset:3072" % (T + 1, KV1 + 12, KV1 + 15))
    a("ds_write_b32 v%d, v%d" % (T + 27, T + 28))
    a("s_waitcnt lgkmcnt(0)")
    st()
    a("s_barrier")
    st()
    a("s_lshl_b32 s18, s3, 10")
    a("s_add_u32 s18, s18, 0x%x" % (slot2 + 16384))
    a("v_add_u32 v%d, s18, v%d" % (T + 1, T))
    RB = FR
    for ww in range(4):
        a("ds_read_b128 v[%d:%d], v%d offset:%d" % (RB + 4 * ww, RB + 4 * ww + 3, T + 1, 4096 * ww))
    a("v_add_u32 v%d, 0x%x, v%d" % (T + 27, slot2, T + 26))
    for ww in range(4):
        a("ds_read_b32 v%d, v%d offset:%d" % (RB + 16 + ww, T + 27, 256 * ww))
    a("s_mov_b32 s21, 0")
    a.label("K1_POLL")
    a("s_waitcnt vmcnt(0)")
    a("v_readfirstlane_b32 s19, v%d" % VF)
    a("s_cmp_lg_u32 s19, 0")
    a("s_cbranch_scc1 K1_POLLDONE")
    a("s_add_u32 s21, s21, 1")
    a("s_cmp_lg_u32 s21, 4000")
    a("s_cbranch_scc1 K1_POLLMORE")
    a("v_mov_b32 v%d, 1" % (T + 29))
    a("s_mov_b64 exec, 1")
    a("global_atomic_add v%d, v%d, v%d, s[16:17] sc0" % (T + 30, VZ, T + 29))
    a("s_waitcnt vmcnt(0)")
    a("s_mov_b64 exec, -1")
    a("v_readfirstlane_b32 s19, v%d" % (T + 30))
    a("s_cmp_lg_u32 s19, 0")
    a("s_cbranch_scc1 K1_POLLMORE")
    zero_kv(a, T + 32, VZ, S_HP)
    a("s_waitcnt vmcnt(0)")
    a("s_mov_b64 exec, 1")
    a("global_atomic_add v%d, v%d, s[16:17] offset:4" % (VZ, T + 29))
    a("s_mov_b64 exec, -1")
    a.label("K1_POLLMORE")
    a("s_sleep 8")
    a("global_load_dword v%d, v%d, s[16:17] offset:4 sc1" % (VF, VZ))
    a("s_branch K1_POLL")
    a.label("K1_POLLDONE")
    st()
    a("s_waitcnt lgkmcnt(0)")
    for i in range(4):
        a("v_add_f32 v%d, v%d, v%d" % (RB + i, RB + i, RB + 4 + i))
        a("v_add_f32 v%d, v%d, v%d" % (RB + 8 + i, RB + 8 + i, RB + 12 + i))
    a("v_add_f32 v%d, v%d, v%d" % (RB + 16, RB + 16, RB + 17))
    a("v_add_f32 v%d, v%d, v%d" % (RB + 18, RB + 18, RB + 19))
    for i in range(4):
        a("v_add_f32 v%d, v%d, v%d" % (RB + i, RB + i, RB + 8 + i))
    a("v_add_f32 v%d, v%d, v%d" % (RB + 16, RB + 16, RB + 18))
    a("s_lshl_b32 s18, s%d, 12" % S_HP)
    a("s_lshl_b32 s19, s3, 10")
    a("s_add_u32 s18, s18, s19")
    for i in range(4):
        a("buffer_atomic_add_f32 v%d, v%d, s[%d:%d], s18 offen offset:%d" % (RB + i, T + 26, R_WS, R_WS + 3, 256 * i))
    a("s_cmp_lg_u32 s3, 0")
    a("s_cbranch_scc1 K1_CEND")
    a("s_lshl_b32 s18, s%d, 8" % S_HP)
    a("s_add_u32 s18, s18, 0x%x" % WS_Z)
    a("buffer_atomic_add_f32 v%d, v%d, s[%d:%d], s18 offen" % (RB + 16, T + 26, R_WS, R_WS + 3))
    a.label("K1_CEND")
    st()
    if gen.STAMP:
        st()
        a("s_waitcnt vmcnt(0)")
        st()
        st.flush(26, T)
    a.label("K1_END")
    a("s_endpgm")
```

```python
from dsl import Asm
from gen import *
import gen

L_WO = 0
L_KV = 65536
L_H = 102400
L_RED = 110592
L_CF = 126976


def gen_k2(a):
    OPT = gen.OPT
    K = "k2_kernel"
    a.raw(".globl %s\n.p2align 8\n.type %s,@function\n%s:" % (K, K, K))
    a("s_cmp_ge_u32 s2, 256")
    a("s_cbranch_scc1 K2_END")
    load_ptrs(a)
    a("v_lshlrev_b32 v8, 4, v0")
    a("v_lshrrev_b32 v1, 6, v0")
    a("v_and_b32 v0, 63, v0")
    a("v_readfirstlane_b32 s3, v1")
    a("s_and_b32 s4, s2, 7")
    a("s_lshr_b32 s5, s2, 3")
    a("s_lshr_b32 s6, s5, 3")
    a("s_lshl_b32 s8, s4, 2")
    a("s_add_u32 s8, s8, s6")
    a("s_and_b32 s9, s5, 7")
    a("s_mov_b32 s26, s3")
    S_RT, S_CT, S_J, S_T1 = 8, 9, 4, 5
    a("s_mov_b32 s%d, 0x%x" % (R_WS + 2, WS_SIZE))
    a("s_mov_b32 s%d, 0x00020000" % (R_WS + 3))
    a("s_mov_b32 s18, 0x1000")
    a("s_mov_b32 s19, 0x3000")
    a("s_mov_b32 s20, 0x5000")
    a("s_mov_b32 s21, 0x7000")
    a("s_waitcnt lgkmcnt(0)")
    a("s_mov_b32 s%d, s%d" % (R_WS, P_WS))
    a("s_mov_b32 s%d, s%d" % (R_WS + 1, P_WS + 1))
    KVR = 72
    for it in range(8):
        a("s_mov_b32 s22, 0x%x" % (it * 8192))
        a("buffer_load_dwordx4 v[%d:%d], v8, s[%d:%d], s22 offen" % (KVR + 4 * it, KVR + 4 * it + 3, R_WS, R_WS + 3))
    a("v_lshrrev_b32 v10, 4, v0")
    a("v_lshrrev_b32 v11, 3, v0")
    a("v_and_b32 v11, 1, v11")
    a("v_lshl_or_b32 v10, v11, 3, v10")
    a("s_and_b32 s18, s3, 1")
    a("s_lshl_b32 s18, s18, 2")
    a("v_add_u32 v10, s18, v10")
    a("v_lshlrev_b32 v10, 4, v10")
    a("v_lshrrev_b32 v11, 2, v0")
    a("v_and_b32 v11, 1, v11")
    a("v_mul_u32_u24 v11, 544, v11")
    a("v_add_u32 v10, v10, v11")
    a("v_lshrrev_b32 v11, 1, v0")
    a("v_and_b32 v11, 1, v11")
    a("v_mul_u32_u24 v11, 272, v11")
    a("v_add_u32 v10, v10, v11")
    a("v_and_b32 v11, 1, v0")
    a("v_lshl_add_u32 v10, v11, 3, v10")
    a("s_lshr_b32 s18, s3, 1")
    a("s_mul_i32 s18, s18, 1088")
    a("s_add_u32 s18, s18, 0x%x" % L_KV)
    a("v_add_u32 v10, s18, v10")

    def kv_convert(vm, extra=None):
        for it in range(8):
            r = KVR + 4 * it
            a("s_waitcnt vmcnt(%d)" % vm.wait_n(("kv", it)))
            a("v_cvt_pk_bf16_f32 v%d, v%d, v%d" % (r, r, r + 1))
            a("v_cvt_pk_bf16_f32 v%d, v%d, v%d" % (r + 1, r + 2, r + 3))
            a("ds_write_b64 v10, v[%d:%d] offset:%d" % (r, r + 1, it * 4 * 1088))

    a("s_cmp_ge_u32 s3, 4")
    a("s_cbranch_scc1 K2_HELPER")

    vm = VMQ()
    for it in range(8):
        vm.issue(("kv", it))
    VKA, VWA, VT, VR = 1, 2, 3, 4
    VWB = 5
    st = Stamper(a, 106, 1)
    st()
    OUT = 8
    D = 40
    KVF = 72
    WOF = 96
    PHI = 128
    a("s_and_b32 s10, s3, 1")
    a("s_lshr_b32 s11, s3, 1")
    a("s_lshl_b32 s18, s%d, 1" % S_RT)
    a("s_add_u32 s18, s18, s10")
    a("s_lshl_b32 s12, s18, 16")
    a("s_lshl_b32 s19, s11, 15")
    a("s_add_u32 s12, s12, s19")
    a("s_add_u32 s12, s12, 0x%x" % WS_PHI)
    a("v_lshlrev_b32 v%d, 4, v0" % VT)
    for t in range(16):
        for ks in range(2):
            o = t * 2048 + ks * 1024
            if o % 4096 == 0 and o:
                a("s_add_u32 s12, s12, 0x1000")
            r = PHI + t * 8 + ks * 4
            a("buffer_load_dwordx4 v[%d:%d], v%d, s[%d:%d], s12 offen offset:%d" % (r, r + 3, VT, R_WS, R_WS + 3, o % 4096))
        vm.issue(("phi", t), 2)
    srd(a, R_OUT, P_OUT, 2048 * 2048)
    a("v_and_b32 v5, 31, v0")
    a("v_min_u32 v5, 16, v5")
    a("v_lshlrev_b32 v5, 4, v5")
    a("v_lshrrev_b32 v6, 5, v0")
    a("v_mul_u32_u24 v7, 272, v6")
    a("v_add_u32 v5, v5, v7")
    a("s_mul_i32 s18, s11, %d" % (16 * 1088))
    a("s_add_u32 s18, s18, 0x%x" % L_KV)
    a("v_add_u32 v%d, s18, v5" % VKA)
    a("v_lshrrev_b32 v5, 2, v0")
    a("v_and_b32 v5, 3, v5")
    a("v_lshrrev_b32 v7, 1, v5")
    a("v_lshl_or_b32 v5, v6, 3, v5")
    a("v_lshlrev_b32 v5, 7, v5")
    a("v_lshl_or_b32 v5, v7, 6, v5")
    a("v_and_b32 v7, 16, v0")
    a("v_lshl_or_b32 v5, v7, 1, v5")
    a("v_and_b32 v7, 1, v0")
    a("v_lshl_or_b32 v5, v7, 4, v5")
    a("v_and_b32 v7, 2, v0")
    a("v_lshl_or_b32 v5, v7, 2, v5")
    a("s_lshl_b32 s18, s11, 15")
    a("v_add_u32 v%d, s18, v5" % VWA)
    a("v_xor_b32 v%d, 64, v%d" % (VWB, VWA))
    a("s_mov_b32 s20, 0x358637bd")
    kv_convert(vm)
    for r in range(32):
        a("v_mov_b32 v%d, 0" % (OUT + r))
    a("s_waitcnt lgkmcnt(0)")

    def kvreads(t):
        b = KVF + (t % 3) * 8
        for ks in range(2):
            a("ds_read_b128 v[%d:%d], v%d offset:%d" % (b + 4 * ks, b + 4 * ks + 3, VKA, t * 1088 + ks * 544))

    def woreads(t):
        b = WOF + (t % 2) * 16
        for ch in range(2):
            for hf in range(2):
                d = b + ch * 4 + hf * 2
                a("ds_read_b64_tr_b16 v[%d:%d], v%d offset:%d" % (d, d + 1, VWB if ch else VWA, (16 * t + 4 * hf) * 128))

    def nd(t):
        b = KVF + (t % 3) * 8
        d = D + (t % 2) * 16
        p = PHI + t * 8
        a("v_mfma_f32_32x32x16_bf16 v[%d:%d], v[%d:%d], v[%d:%d], 0" % (d, d + 15, b, b + 3, p, p + 3))
        a("v_mfma_f32_32x32x16_bf16 v[%d:%d], v[%d:%d], v[%d:%d], v[%d:%d]" % (d, d + 15, b + 4, b + 7, p + 4, p + 7, d, d + 15))

    def valu(t):
        d = D + (t % 2) * 16
        a("v_add_f32 v%d, s20, v%d" % (VR, d + 8))
        a("v_rcp_f32 v%d, v%d" % (VR, VR))
        for r in range(8):
            a("v_mul_f32 v%d, v%d, v%d" % (d + r, d + r, VR))
        for k in range(4):
            a("v_cvt_pk_bf16_f32 v%d, v%d, v%d" % (d + k, d + 2 * k, d + 2 * k + 1))

    def outm(t):
        b = WOF + (t % 2) * 16
        d = D + (t % 2) * 16
        for ch in range(2):
            o = OUT + 16 * ch
            a("v_mfma_f32_32x32x16_bf16 v[%d:%d], v[%d:%d], v[%d:%d], v[%d:%d]" % (o, o + 15, b + 4 * ch, b + 4 * ch + 3, d, d + 3, o, o + 15))

    st()
    a("s_barrier")
    st()
    q = []

    def rd(tag, fn, t, n):
        fn(t)
        q.extend([tag] * n)

    def waitl(tag):
        idx = max(i for i, x in enumerate(q) if x == tag)
        n = len(q) - 1 - idx
        a("s_waitcnt lgkmcnt(%d)" % min(n, 15))

    rd(("kv", 0), kvreads, 0, 2)
    rd(("kv", 1), kvreads, 1, 2)
    rd(("wo", 0), woreads, 0, 4)
    waitl(("kv", 0))
    a("s_waitcnt vmcnt(%d)" % vm.wait_n(("phi", 0)))
    nd(0)
    for t in range(16):
        if t + 2 < 16:
            rd(("kv", t + 2), kvreads, t + 2, 2)
        if t + 1 < 16:
            if (t + 1) % 4 == 0:
                a("s_barrier")
                st()
            rd(("wo", t + 1), woreads, t + 1, 4)
            waitl(("kv", t + 1))
            a("s_waitcnt vmcnt(%d)" % vm.wait_n(("phi", t + 1)))
            nd(t + 1)
        valu(t)
        waitl(("wo", t))
        outm(t)
    st()
    a("s_lshl_b32 s18, s3, 12")
    a("s_add_u32 s18, s18, 0x%x" % L_RED)
    a("v_add_u32 v5, s18, v%d" % VT)
    a("s_xor_b32 s18, s3, 2")
    a("s_lshl_b32 s18, s18, 12")
    a("s_add_u32 s18, s18, 0x%x" % L_RED)
    a("v_add_u32 v6, s18, v%d" % VT)
    a("s_cmp_eq_u32 s11, 0")
    a("s_cbranch_scc1 K2_R0")
    for r in range(16):
        a("v_swap_b32 v%d, v%d" % (OUT + r, OUT + 16 + r))
    a.label("K2_R0")
    for qd in range(4):
        a("ds_write_b128 v5, v[%d:%d] offset:%d" % (OUT + 16 + 4 * qd, OUT + 16 + 4 * qd + 3, 1024 * qd))
    a("v_and_b32 v5, 31, v0")
    a("v_lshrrev_b32 v7, 5, v0")
    a("v_lshlrev_b32 v7, 4, v7")
    a("v_lshl_or_b32 v5, v5, 11, v7")
    a("s_lshl_b32 s18, s%d, 6" % S_RT)
    a("s_lshl_b32 s19, s10, 5")
    a("s_add_u32 s18, s18, s19")
    a("s_lshl_b32 s18, s18, 11")
    a("s_lshl_b32 s19, s%d, 7" % S_CT)
    a("s_add_u32 s18, s18, s19")
    a("s_lshl_b32 s19, s11, 6")
    a("s_add_u32 s18, s18, s19")
    a("s_waitcnt lgkmcnt(0)")
    a("s_barrier")
    for qd in range(4):
        a("ds_read_b128 v[%d:%d], v6 offset:%d" % (D + 4 * qd, D + 4 * qd + 3, 1024 * qd))
    for qd in range(4):
        a("s_waitcnt lgkmcnt(%d)" % (3 - qd))
        for i in range(4):
            r = 4 * qd + i
            a("v_add_f32 v%d, v%d, v%d" % (OUT + r, OUT + r, D + r))
    for k in range(8):
        a("v_cvt_pk_bf16_f32 v%d, v%d, v%d" % (D + 16 + k, OUT + 2 * k, OUT + 2 * k + 1))
    a("buffer_store_dwordx4 v[%d:%d], v5, s[%d:%d], s18 offen" % (D + 16, D + 19, R_OUT, R_OUT + 3))
    a("buffer_store_dwordx4 v[%d:%d], v5, s[%d:%d], s18 offen offset:32" % (D + 20, D + 23, R_OUT, R_OUT + 3))
    if gen.STAMP:
        st()
        a("s_waitcnt vmcnt(0)")
        st()
        st.flush(26, 5)
    a("s_endpgm")

    a.label("K2_HELPER")
    vm = VMQ()
    for it in range(8):
        vm.issue(("kv", it))
    st = Stamper(a, 250, 1)
    st()
    a("s_sub_u32 s3, s3, 4")
    a("s_and_b32 s10, s3, 1")
    a("s_lshr_b32 s11, s3, 1")
    a("v_subrev_u32 v9, 0x1000, v8")
    a("s_mov_b32 s22, 0x%x" % WS_Z)
    a("buffer_load_dwordx4 v[%d:%d], v9, s[%d:%d], s22 offen" % (KVR + 32, KVR + 35, R_WS, R_WS + 3))
    vm.issue("z")
    srd(a, R_WO, P_WO, 512 * 1024)
    srd(a, R_CR, P_CR, 2048 * 4096)
    srd(a, R_CI, P_CI, 2048 * 4096)
    a("v_lshrrev_b32 v1, 2, v0")
    a("v_and_b32 v2, 3, v0")
    a("v_lshlrev_b32 v2, 4, v2")
    a("v_lshl_or_b32 v3, v1, 16, v2")
    a("s_lshl_b32 s18, s11, 5")
    a("s_add_u32 s18, s18, s%d" % S_T1)
    a("s_lshl_b32 s18, s18, 10")
    a("s_lshl_b32 s19, s%d, 7" % S_J)
    a("s_add_u32 s18, s18, s19")
    a("s_lshl_b32 s19, s10, 6")
    a("s_add_u32 s18, s18, s19")
    a("s_add_u32 s18, s18, 0x%x" % WS_H)
    a("s_lshl_b32 s19, s10, 12")
    a("s_lshl_b32 s20, s11, 11")
    a("s_add_u32 s19, s19, s20")
    a("s_add_u32 m0, s19, 0x%x" % L_H)
    a("s_nop 0")
    a("buffer_load_dwordx4 v3, s[%d:%d], s18 offen lds" % (R_WS, R_WS + 3))
    a("s_add_u32 m0, s19, 0x%x" % (L_H + 1024))
    a("s_add_u32 s18, s18, 0x100000")
    a("buffer_load_dwordx4 v3, s[%d:%d], s18 offen lds" % (R_WS, R_WS + 3))
    vm.issue("h", 2)
    a("s_cmp_eq_u32 s%d, 0" % S_T1)
    a("s_cselect_b32 s12, 1, 0")
    a("s_and_b32 s13, s12, s10")
    a("s_lshl_b32 s14, s13, 5")
    a("s_add_u32 s14, s14, s%d" % S_T1)
    a("v_lshl_or_b32 v7, v1, 18, v2")
    a("s_lshl_b32 s18, s14, 12")
    a("s_lshl_b32 s19, s10, 12")
    a("s_lshl_b32 s20, s11, 11")
    a("s_add_u32 s19, s19, s20")
    a("s_cmp_eq_u32 s11, 0")
    a("s_cbranch_scc1 K2_CFR")
    for R in (R_CI, R_CR):
        if R == R_CR:
            a.label("K2_CFR")
        a("s_add_u32 m0, s19, 0x%x" % L_CF)
        a("s_nop 0")
        a("buffer_load_dwordx4 v7, s[%d:%d], s18 offen lds" % (R, R + 3))
        a("s_add_u32 m0, s19, 0x%x" % (L_CF + 1024))
        a("s_add_u32 s20, s18, 0x400000")
        a("buffer_load_dwordx4 v7, s[%d:%d], s20 offen lds" % (R, R + 3))
        if R == R_CI:
            a("s_branch K2_CFE")
    a.label("K2_CFE")
    vm.issue("coef", 2)
    a("v_lshrrev_b32 v9, 3, v0")
    a("v_lshrrev_b32 v11, 2, v0")
    a("v_and_b32 v11, 4, v11")
    a("v_and_b32 v12, 7, v0")
    a("v_xor_b32 v11, v11, v12")
    a("v_lshlrev_b32 v11, 4, v11")
    a("v_lshl_or_b32 v9, v9, 10, v11")
    a("s_lshl_b32 s15, s11, 18")
    a("s_lshl_b32 s18, s10, 13")
    a("s_add_u32 s15, s15, s18")
    a("s_lshl_b32 s18, s%d, 7" % S_CT)
    a("s_add_u32 s15, s15, s18")
    a("s_lshl_b32 s16, s11, 15")
    a("s_lshl_b32 s18, s10, 10")
    a("s_add_u32 s16, s16, s18")
    for t in range(16):
        a("s_add_u32 m0, s16, 0x%x" % (L_WO + t * 2048))
        a("s_add_u32 s18, s15, 0x%x" % (t * 16384))
        a("buffer_load_dwordx4 v9, s[%d:%d], s18 offen lds" % (R_WO, R_WO + 3))
        vm.issue(("wo", t))
    st()
    srd(a, R_OUT, P_OUT, 2048 * 2048)
    a("v_and_b32 v4, 31, v0")
    a("v_lshlrev_b32 v5, 6, v4")
    a("v_add_u32 v5, s14, v5")
    a("v_lshrrev_b32 v6, 5, v0")
    a("v_lshlrev_b32 v7, 4, v6")
    a("v_lshl_or_b32 v7, v4, 6, v7")
    a("s_lshl_b32 s18, s10, 12")
    a("s_add_u32 s18, s18, 0x%x" % L_CF)
    a("v_add_u32 v7, s18, v7")
    a("v_and_b32 v13, 3, v1")
    a("v_lshl_or_b32 v13, v6, 3, v13")
    a("v_lshlrev_b32 v13, 6, v13")
    a("v_and_b32 v11, 16, v0")
    a("v_lshl_or_b32 v13, v11, 1, v13")
    a("v_and_b32 v11, 1, v0")
    a("v_lshl_or_b32 v13, v11, 4, v13")
    a("v_and_b32 v11, 2, v0")
    a("v_lshl_or_b32 v13, v11, 2, v13")
    a("s_lshl_b32 s18, s13, 11")
    a("s_add_u32 s18, s18, 0x%x" % L_H)
    a("v_add_u32 v11, s18, v13")
    a("v_add_u32 v12, 0x%x, v13" % (L_H + 2048))
    a("s_xor_b32 s18, s10, s11")
    a("s_cmp_lg_u32 s12, 0")
    a("s_cselect_b32 s18, s11, s18")
    a("s_cmp_eq_u32 s18, 0")
    a("s_cselect_b32 s17, 0x80008000, 0")
    a("v_cmp_eq_u32 vcc, 0, v4")
    a("s_cmp_eq_u32 s%d, 0" % S_J)
    a("s_cselect_b64 s[22:23], vcc, 0")
    a("s_lshl_b32 s18, s3, 3")
    a("v_lshrrev_b32 v14, 3, v0")
    a("v_add_u32 v14, s18, v14")
    a("v_mul_u32_u24 v14, 1088, v14")
    a("v_lshrrev_b32 v15, 2, v0")
    a("v_and_b32 v15, 1, v15")
    a("v_mul_u32_u24 v15, 544, v15")
    a("v_add_u32 v14, v14, v15")
    a("v_lshrrev_b32 v15, 1, v0")
    a("v_and_b32 v15, 1, v15")
    a("v_mul_u32_u24 v15, 272, v15")
    a("v_add_u32 v14, v14, v15")
    a("v_and_b32 v15, 1, v0")
    a("v_lshl_add_u32 v14, v15, 3, v14")
    a("v_add_u32 v14, 0x%x, v14" % (L_KV + 256))
    kv_convert(vm)
    r = KVR + 32
    a("s_waitcnt vmcnt(%d)" % vm.wait_n("z"))
    a("v_cvt_pk_bf16_f32 v%d, v%d, v%d" % (r, r, r + 1))
    a("v_cvt_pk_bf16_f32 v%d, v%d, v%d" % (r + 1, r + 2, r + 3))
    a("ds_write_b64 v14, v[%d:%d]" % (r, r + 1))
    st()
    a("s_waitcnt vmcnt(%d) lgkmcnt(0)" % vm.wait_n(("wo", 3)))
    st()
    a("s_barrier")
    st()
    CR0, CI0 = 16, 24
    HA, HB = 32, 40
    HA2, HB2 = 48, 56
    ACC = 64
    SC = 80
    NC = 88
    SR = 96

    def hreads(base, addr, ab):
        for ks in range(2):
            for hf in range(2):
                d = base + 4 * ks + 2 * hf
                a("ds_read_b64_tr_b16 v[%d:%d], v%d offset:%d" % (d, d + 1, addr, ab * 4096 + (16 * ks + 4 * hf) * 64))
    for ks in range(2):
        a("ds_read_b128 v[%d:%d], v7 offset:%d" % (CI0 + 4 * ks, CI0 + 4 * ks + 3, 2048 + 32 * ks))
    for ks in range(2):
        a("ds_read_b128 v[%d:%d], v7 offset:%d" % (CR0 + 4 * ks, CR0 + 4 * ks + 3, 32 * ks))
    hreads(HA, 11, 0)
    hreads(HB, 11, 1)
    a("s_waitcnt lgkmcnt(8)")
    a("s_mov_b32 s19, 0x80008000")
    for i in range(8):
        a("v_xor_b32 v%d, s17, v%d" % (SC + i, CI0 + i))
        a("v_xor_b32 v%d, s19, v%d" % (NC + i, CI0 + i))
        a("v_xor_b32 v%d, s17, v%d" % (SR + i, CR0 + i))
    hreads(HA2, 12, 0)
    hreads(HB2, 12, 1)
    a("s_waitcnt lgkmcnt(0)")
    a("s_cmp_eq_u32 s11, 0")
    a("s_cbranch_scc1 K2_FIXD")
    for i in range(8):
        a("v_cndmask_b32 v%d, v%d, v%d, s[22:23]" % (HA + i, HA + i, HB + i))
        a("v_cndmask_b32 v%d, v%d, v%d, s[22:23]" % (HA2 + i, HA2 + i, HB2 + i))
    a.label("K2_FIXD")
    for i in range(8):
        a("v_cndmask_b32 v%d, v%d, 0, s[22:23]" % (HB + i, HB + i))
        a("v_cndmask_b32 v%d, v%d, 0, s[22:23]" % (HB2 + i, HB2 + i))

    def mf(A, B, first=False):
        c = "0" if first else "v[%d:%d]" % (ACC, ACC + 15)
        a("v_mfma_f32_32x32x16_bf16 v[%d:%d], v[%d:%d], v[%d:%d], %s" % (ACC, ACC + 15, A, A + 3, B, B + 3, c))
    mf(HA, CR0, True)
    mf(HA + 4, CR0 + 4)
    mf(HB, SC)
    mf(HB + 4, SC + 4)
    a("s_cmp_lg_u32 s12, 0")
    a("s_cbranch_scc1 K2_B0DONE")
    mf(HA2, NC)
    mf(HA2 + 4, NC + 4)
    mf(HB2, SR)
    mf(HB2 + 4, SR + 4)
    a.label("K2_B0DONE")
    if OPT["k2early"]:
        a("s_waitcnt vmcnt(%d)" % vm.wait_n(("wo", 7)))
        a("s_barrier")
    a("s_andn2_b32 s18, s10, s12")
    a("v_sub_u32 v13, 0x800, v5")
    a("s_cmp_lg_u32 s18, 0")
    a("s_cselect_b64 vcc, -1, 0")
    a("v_cndmask_b32 v13, v5, v13, vcc")
    a("v_lshlrev_b32 v13, 11, v13")
    a("s_cmp_lg_u32 s11, 0")
    a("s_cbranch_scc1 K2_BMIR")
    PK = 104
    for k in range(8):
        a("v_cvt_pk_bf16_f32 v%d, v%d, v%d" % (PK + k, ACC + 2 * k, ACC + 2 * k + 1))
    a("v_lshl_add_u32 v13, v6, 4, v13")
    a("s_lshl_b32 s18, s%d, 6" % S_J)
    a("s_add_u32 s18, s18, 1024")
    a("buffer_store_dwordx4 v[%d:%d], v13, s[%d:%d], s18 offen" % (PK, PK + 3, R_OUT, R_OUT + 3))
    a("buffer_store_dwordx4 v[%d:%d], v13, s[%d:%d], s18 offen offset:32" % (PK + 4, PK + 7, R_OUT, R_OUT + 3))
    a("s_branch K2_BDONE")
    a.label("K2_BMIR")
    for g in range(2):
        x = ACC + 8 * g
        p = PK + 4 * g
        a("v_cvt_pk_bf16_f32 v%d, v%d, v%d" % (p, x + 6, x + 5))
        a("v_cvt_pk_bf16_f32 v%d, v%d, v%d" % (p + 1, x + 4, x + 3))
        a("v_cvt_pk_bf16_f32 v%d, v%d, v%d" % (p + 2, x + 2, x + 1))
        a("v_cvt_pk_bf16_f32 v%d, v%d, v%d" % (p + 3, x + 7, x + 0))
    a("v_xor_b32 v14, 1, v6")
    a("v_lshl_add_u32 v14, v14, 4, v13")
    a("s_lshl_b32 s18, s%d, 6" % S_J)
    a("s_sub_u32 s18, %d, s18" % (2048 - 14 - 32 - 16))
    for g in range(2):
        p = PK + 4 * g
        off = 32 * (1 - g)
        a("buffer_store_short v%d, v14, s[%d:%d], s18 offen offset:%d" % (p + 3, R_OUT, R_OUT + 3, off))
        a("buffer_store_dwordx3 v[%d:%d], v14, s[%d:%d], s18 offen offset:%d" % (p, p + 2, R_OUT, R_OUT + 3, off + 2))
    a("buffer_store_short_d16_hi v%d, v14, s[%d:%d], s18 offen offset:14" % (PK + 7, R_OUT, R_OUT + 3))
    a("v_add_u32 v15, s18, v14")
    a("v_add_u32 v15, 46, v15")
    a("v_add_u32 v14, 0x600, v13")
    a("v_cmp_gt_u32 vcc, 32, v0")
    a("s_cmp_eq_u32 s%d, 0" % S_J)
    a("s_cselect_b64 vcc, vcc, 0")
    a("v_cndmask_b32 v15, v15, v14, vcc")
    a("buffer_store_short_d16_hi v%d, v15, s[%d:%d], 0 offen" % (PK + 3, R_OUT, R_OUT + 3))
    a.label("K2_BDONE")
    vm.issue("bst", 2)
    st()
    for ph in range(2 if OPT["k2early"] else 1, 4):
        a("s_waitcnt vmcnt(%d)" % vm.wait_n(("wo", 4 * ph + 3)))
        st()
        a("s_barrier")
    if gen.STAMP:
        a("s_waitcnt vmcnt(0)")
        st()
        st.flush(26, 5)
    a.label("K2_END")
    a("s_endpgm")
```

```python
import sys
from dsl import Asm, vr, sr

NAME = "concat_heads__linear_kernel_hedgehog__spectral_fnet__prompt"

WS_KV = 0
WS_Z = 65536
WS_PHI = 1 << 20
WS_H = 8 << 20
WS_SIZE = 64 << 20

LOG2E = 0x3FB8AA3B
NLOG2E = 0xBFB8AA3B

SLOT = 32768


class VMQ:
    def __init__(self):
        self.q = []

    def issue(self, tag, n=1):
        self.q += [tag] * n

    def wait_n(self, tag):
        idx = max(i for i, t in enumerate(self.q) if t == tag)
        return len(self.q) - 1 - idx


def srd(a, d, lo, nbytes):
    a("s_mov_b32 s%d, s%d" % (d, lo))
    a("s_mov_b32 s%d, s%d" % (d + 1, lo + 1))
    a("s_mov_b32 s%d, 0x%x" % (d + 2, nbytes))
    a("s_mov_b32 s%d, 0x00020000" % (d + 3))


P_X, P_W, P_WP, P_WO, P_XB, P_CR, P_CI, P_DR = 32, 34, 36, 38, 40, 42, 44, 46
P_DI, P_OUT, P_DBG, P_WS = 48, 50, 52, 54
R_X, R_W, R_XB, R_DR, R_DI, R_WS, R_CR, R_CI, R_WP, R_WO, R_OUT = 56, 60, 64, 68, 72, 76, 80, 84, 88, 92, 96


def load_ptrs(a):
    a("s_load_dwordx16 s[32:47], s[0:1], 0")
    a("s_load_dwordx8 s[48:55], s[0:1], 64")


def softmax_units(a, X, T, P, mid=None):
    assert X % 2 == 0 and T % 2 == 0
    MX = [T + 0, T + 2]
    MN = [T + 4, T + 6]
    TX = [T + 1, T + 3]
    TN = [T + 5, T + 7]
    for hd in range(2):
        x = X + 8 * hd
        a("v_max3_f32 v%d, v%d, v%d, v%d" % (MX[hd], x, x + 1, x + 2))
        a("v_min3_f32 v%d, v%d, v%d, v%d" % (MN[hd], x, x + 1, x + 2))
    for k in (3, 5):
        for hd in range(2):
            x = X + 8 * hd
            a("v_max3_f32 v%d, v%d, v%d, v%d" % (MX[hd], MX[hd], x + k, x + k + 1))
            a("v_min3_f32 v%d, v%d, v%d, v%d" % (MN[hd], MN[hd], x + k, x + k + 1))
    for hd in range(2):
        x = X + 8 * hd
        a("v_max_f32 v%d, v%d, v%d" % (MX[hd], MX[hd], x + 7))
        a("v_min_f32 v%d, v%d, v%d" % (MN[hd], MN[hd], x + 7))
    for hd in range(2):
        a("v_mov_b32 v%d, v%d" % (TX[hd], MX[hd]))
        a("v_mov_b32 v%d, v%d" % (TN[hd], MN[hd]))
    for hd in range(2):
        a("v_permlane32_swap_b32 v%d, v%d" % (MX[hd], TX[hd]))
        a("v_permlane32_swap_b32 v%d, v%d" % (MN[hd], TN[hd]))
    for hd in range(2):
        a("v_max_f32 v%d, v%d, v%d" % (MX[hd], MX[hd], TX[hd]))
        a("v_min_f32 v%d, v%d, v%d" % (MN[hd], MN[hd], TN[hd]))
    for hd in range(2):
        a("v_mul_f32 v%d, s29, v%d" % (MX[hd], MX[hd]))
        a("v_mul_f32 v%d, s28, v%d" % (MN[hd], MN[hd]))
    EM = T + 8
    for r in range(0, 16, 2):
        hd = r >> 3
        a("v_pk_fma_f32 v[%d:%d], v[%d:%d], s[28:29], v[%d:%d] op_sel_hi:[1,0,0] neg_lo:[1,0,0] neg_hi:[1,0,0]" % (EM + r, EM + r + 1, X + r, X + r + 1, MN[hd], MN[hd] + 1))
        a("v_pk_fma_f32 v[%d:%d], v[%d:%d], s[28:29], v[%d:%d] op_sel_hi:[1,0,0]" % (X + r, X + r + 1, X + r, X + r + 1, MX[hd], MX[hd] + 1))
    for r in range(16):
        a("v_exp_f32 v%d, v%d" % (EM + r, EM + r))
        a("v_exp_f32 v%d, v%d" % (X + r, X + r))
    if mid is not None:
        mid()
    SPp = [T + 0, T + 2]
    SMp = [T + 4, T + 6]
    def pr(r):
        return "v[%d:%d]" % (r, r + 1)
    for hd in range(2):
        a("v_pk_add_f32 %s, %s, %s" % (pr(SPp[hd]), pr(X + 8 * hd), pr(X + 8 * hd + 2)))
        a("v_pk_add_f32 %s, %s, %s" % (pr(SMp[hd]), pr(EM + 8 * hd), pr(EM + 8 * hd + 2)))
    for k in (4, 6):
        for hd in range(2):
            a("v_pk_add_f32 %s, %s, %s" % (pr(SPp[hd]), pr(SPp[hd]), pr(X + 8 * hd + k)))
            a("v_pk_add_f32 %s, %s, %s" % (pr(SMp[hd]), pr(SMp[hd]), pr(EM + 8 * hd + k)))
    for hd in range(2):
        a("v_add_f32 v%d, v%d, v%d" % (SPp[hd], SPp[hd], SPp[hd] + 1))
        a("v_add_f32 v%d, v%d, v%d" % (SMp[hd], SMp[hd], SMp[hd] + 1))
    for hd in range(2):
        a("v_mov_b32 v%d, v%d" % (SPp[hd] + 1, SPp[hd]))
        a("v_mov_b32 v%d, v%d" % (SMp[hd] + 1, SMp[hd]))
    for hd in range(2):
        a("v_permlane32_swap_b32 v%d, v%d" % (SPp[hd], SPp[hd] + 1))
        a("v_permlane32_swap_b32 v%d, v%d" % (SMp[hd], SMp[hd] + 1))
    for hd in range(2):
        a("v_add_f32 v%d, v%d, v%d" % (SPp[hd], SPp[hd], SPp[hd] + 1))
        a("v_add_f32 v%d, v%d, v%d" % (SMp[hd], SMp[hd], SMp[hd] + 1))
    for hd in range(2):
        a("v_rcp_f32 v%d, v%d" % (SPp[hd], SPp[hd]))
        a("v_rcp_f32 v%d, v%d" % (SMp[hd], SMp[hd]))
    for r in range(0, 16, 2):
        hd = r >> 3
        a("v_pk_mul_f32 %s, %s, %s op_sel_hi:[1,0]" % (pr(X + r), pr(X + r), pr(SPp[hd])))
        a("v_pk_mul_f32 %s, %s, %s op_sel_hi:[1,0]" % (pr(EM + r), pr(EM + r), pr(SMp[hd])))
    for hd in range(2):
        for d in range(4):
            a("v_cvt_pk_bf16_f32 v%d, v%d, v%d" % (P + 8 * hd + d, X + 8 * hd + 2 * d, X + 8 * hd + 2 * d + 1))
            a("v_cvt_pk_bf16_f32 v%d, v%d, v%d" % (P + 8 * hd + 4 + d, EM + 8 * hd + 2 * d, EM + 8 * hd + 2 * d + 1))


def wphi_frags(a, vm, LANE, WF, A1, A2, T, s_hp):
    a("v_and_b32 v%d, 31, v%d" % (T, LANE))
    a("v_lshrrev_b32 v%d, 5, v%d" % (T + 1, LANE))
    a("v_and_b32 v%d, 3, v%d" % (T + 2, T))
    a("v_and_b32 v%d, 4, v%d" % (T + 3, T))
    a("v_lshl_or_b32 v%d, v%d, 1, v%d" % (T + 2, T + 3, T + 2))
    a("v_and_b32 v%d, 8, v%d" % (T + 3, T))
    a("v_lshrrev_b32 v%d, 1, v%d" % (T + 3, T + 3))
    a("v_or_b32 v%d, v%d, v%d" % (T + 2, T + 2, T + 3))
    a("v_lshrrev_b32 v%d, 4, v%d" % (T + 3, T))
    a("v_lshl_or_b32 v%d, v%d, 8, v%d" % (T + 2, T + 3, T + 2))
    a("v_lshl_or_b32 v%d, v%d, 7, v%d" % (T + 2, T + 1, T + 2))
    a("v_lshlrev_b32 v%d, 1, v%d" % (T + 2, T + 2))
    a("s_lshl_b32 s27, s%d, 10" % s_hp)
    for j in range(8):
        a("buffer_load_ushort v%d, v%d, s[%d:%d], s27 offen offset:%d" % (WF + j, T + 2, R_WP, R_WP + 3, j * 32))
    vm.issue("wphi", 8)
    return T


def wphi_finish(a, WF, A1, A2, Ti):
    for d in range(4):
        a("v_lshl_or_b32 v%d, v%d, 16, v%d" % (WF + d * 2, WF + 2 * d + 1, WF + 2 * d))
    a("v_cmp_gt_u32 vcc, 16, v%d" % Ti)
    for d in range(4):
        a("v_cndmask_b32 v%d, 0, v%d, vcc" % (A1 + d, WF + 2 * d))
        a("v_cndmask_b32 v%d, v%d, 0, vcc" % (A2 + d, WF + 2 * d))


STAMP = False
WS_ST = 32 << 20


class Stamper:
    def __init__(self, a, vreg, kid):
        self.a, self.v, self.k, self.n = a, vreg, kid, 0

    def __call__(self):
        if not STAMP:
            return
        a = self.a
        a("s_memrealtime s[100:101]")
        a("s_waitcnt lgkmcnt(0)")
        a("v_writelane_b32 v%d, s100, %d" % (self.v, self.n))
        if self.n == 0:
            a("s_memtime s[100:101]")
            a("s_waitcnt lgkmcnt(0)")
            a("v_writelane_b32 v%d, s100, 62" % self.v)
        self.n += 1

    def flush(self, wave_sgpr_expr_reg, t0):
        if not STAMP:
            return
        a = self.a
        a("s_memtime s[100:101]")
        a("s_waitcnt lgkmcnt(0)")
        a("v_writelane_b32 v%d, s100, 63" % self.v)
        a("s_lshl_b32 s100, s2, 3")
        a("s_add_u32 s100, s100, s%d" % wave_sgpr_expr_reg)
        a("s_lshl_b32 s100, s100, 8")
        a("s_add_u32 s100, s100, 0x%x" % (WS_ST + self.k * 256 * 8 * 256))
        a("v_mbcnt_lo_u32_b32 v%d, -1, 0" % t0)
        a("v_mbcnt_hi_u32_b32 v%d, -1, v%d" % (t0, t0))
        a("v_lshlrev_b32 v%d, 2, v%d" % (t0, t0))
        a("buffer_store_dword v%d, v%d, s[%d:%d], s100 offen" % (self.v, t0, R_WS, R_WS + 3))


DBGST = False
OPT = dict(touch=1, rot=0, wotouch=1, la=2, x3pos=0, v=2, tm=(4, 3, 5), xrot=1, head=2, xbpos=1, k2v=2, k2early=1)
STSFX = ""


def dbgst(a, word, inv=False, k2=False, wave_sgpr=26, vr0=252):
    if not DBGST:
        return
    global _dbg_uid
    _dbg_uid += 1
    L = "DBGST_w%d" % word
    a("s_and_b32 s100, s%d, 3" % wave_sgpr)
    a("s_cmp_lg_u32 s100, 0")
    a("s_cbranch_scc1 %s" % L)
    a("s_memrealtime s[100:101]")
    a("s_waitcnt lgkmcnt(0)")
    if inv:
        a("s_not_b32 s100, s100")
    a("v_mov_b32 v%d, s100" % vr0)
    a("v_mov_b32 v%d, 0" % (vr0 + 1))
    a("s_mov_b64 exec, 1")
    a("global_atomic_umax v%d, v%d, s[%d:%d] offset:%d" % (vr0 + 1, vr0, P_DBG, P_DBG + 1, word * 4 - (512 if k2 else 0)))
    a("s_mov_b64 exec, -1")
    a.label(L)


_dbg_uid = 0


def touch_setup(a, VT, SB):
    VXo, VWo, VBo, VDo, VL, D0 = VT + 3, VT + 4, VT + 5, VT + 6, VT + 7, VT + 8
    a("v_lshlrev_b32 v%d, 10, v0" % VXo)
    a("v_lshlrev_b32 v%d, 7, v0" % VL)
    a("v_lshrrev_b32 v%d, 2, v0" % VWo)
    a("v_mul_u32_u24 v%d, 0xc00, v%d" % (VWo, VWo))
    a("v_and_b32 v%d, 3, v0" % D0)
    a("v_lshl_or_b32 v%d, v%d, 7, v%d" % (VWo, D0, VWo))
    a("v_and_b32 v%d, 1, v0" % D0)
    a("v_lshlrev_b32 v%d, 7, v%d" % (D0, D0))
    a("v_lshrrev_b32 v%d, 1, v0" % VDo)
    a("v_lshl_or_b32 v%d, v%d, 10, v%d" % (VDo, VDo, D0))
    a("v_and_b32 v%d, 0xfff, v%d" % (VBo, VDo))
    a("v_lshrrev_b32 v%d, 3, v0" % D0)
    a("v_lshl_or_b32 v%d, v%d, 15, v%d" % (VBo, D0, VBo))
    a("s_lshl_b32 s18, s5, 2")
    a("s_add_u32 s18, s18, s3")
    a("s_lshr_b32 s19, s4, 1")
    a("s_lshl_b32 s19, s19, 19")
    a("s_and_b32 s20, s4, 1")
    a("s_lshl_b32 s20, s20, 9")
    TM = OPT["tm"]
    for k in range(3):
        sb, vo = SB + 4 * k, VT + k
        L = "K1_TS%d" % k

        def fin(ptr, off, vsrc, tm):
            a("s_add_u32 s%d, s%d, s%d" % (sb, ptr, off))
            a("s_addc_u32 s%d, s%d, 0" % (sb + 1, ptr + 1))
            a("v_mov_b32 v%d, v%d" % (vo, vsrc))
            a("s_mov_b32 s%d, %s" % (sb + 2, tm))
            a("s_branch %s_E" % L)

        a("s_add_u32 s21, s18, %d" % (128 * k))
        if k < 2:
            a("s_cmp_ge_u32 s21, 140")
            a("s_cbranch_scc1 %s_B" % L)
            a("s_mul_i32 s22, s21, 205")
            a("s_lshr_b32 s22, s22, 12")
            a("s_mul_i32 s23, s22, 20")
            a("s_sub_u32 s23, s21, s23")
            a("s_add_u32 s22, s22, 1")
            a("s_cmp_gt_u32 s22, %d" % TM[0])
            a("s_cselect_b32 s25, 1, 0")
            if OPT["xrot"]:
                a("s_add_u32 s22, s22, s4")
                a("s_and_b32 s22, s22, 7")
            a("s_cmp_ge_u32 s23, 8")
            a("s_cbranch_scc1 %s_W" % L)
            a("s_lshl_b32 s23, s23, 16")
            a("s_lshl_b32 s22, s22, 7")
            a("s_add_u32 s23, s23, s22")
            a("s_add_u32 s23, s23, s19")
            fin(P_X, 23, VXo, "s25")
            a.label("%s_W" % L)
            a("s_sub_u32 s23, s23, 8")
            a("s_lshr_b32 s24, s23, 2")
            a("s_and_b32 s23, s23, 3")
            a("s_lshl_b32 s22, s22, 2")
            a("s_add_u32 s22, s22, s23")
            a("s_mul_i32 s22, s22, 0xc000")
            a("s_lshl_b32 s24, s24, 10")
            a("s_add_u32 s22, s22, s24")
            a("s_add_u32 s22, s22, s20")
            fin(P_W, 22, VWo, "s25")
            a.label("%s_B" % L)
        if k == 1:
            a("s_cmp_ge_u32 s21, 236")
            a("s_cbranch_scc1 %s_O" % L)
            a("s_sub_u32 s21, s21, 140")
            a("s_mul_i32 s22, s21, 171")
            a("s_lshr_b32 s22, s22, 12")
            a("s_mul_i32 s23, s22, 24")
            a("s_sub_u32 s23, s21, s23")
            a("s_cmp_eq_u32 s22, 0")
            a("s_cselect_b32 s25, 1, %d" % TM[1])
            if OPT["xrot"]:
                a("s_add_u32 s22, s22, s4")
                a("s_and_b32 s22, s22, 3")
            a("s_lshl_b32 s22, s22, 8")
            a("s_cmp_ge_u32 s23, 8")
            a("s_cbranch_scc1 %s_D" % L)
            a("s_lshl_b32 s23, s23, 18")
            a("s_lshl_b32 s24, s4, 12")
            a("s_add_u32 s23, s23, s24")
            a("s_add_u32 s23, s23, s22")
            fin(P_XB, 23, VBo, "s25")
            a.label("%s_D" % L)
            a("s_sub_u32 s23, s23, 8")
            a("s_and_b32 s24, s23, 7")
            a("s_lshl_b32 s24, s24, 15")
            a("s_add_u32 s24, s24, s22")
            a("s_cmp_ge_u32 s23, 8")
            a("s_cbranch_scc1 %s_I" % L)
            fin(P_DR, 24, VDo, "s25")
            a.label("%s_I" % L)
            fin(P_DI, 24, VDo, "s25")
            a.label("%s_O" % L)
        if k >= 1:
            a("s_sub_u32 s22, s21, 236")
            a("s_cmp_ge_u32 s22, 64")
            a("s_cselect_b32 s25, 99, %d" % TM[2])
            a("s_lshl_b32 s24, s4, 3")
            a("s_add_u32 s22, s22, s24")
            a("s_and_b32 s22, s22, 63")
            a("s_lshl_b32 s22, s22, 13")
            fin(P_WO, 22, VL, "s25")
        a.label("%s_E" % L)


def touch_point(a, VT, SB, DST, tm, slots=(0, 1, 2)):
    for k in slots:
        L = "K1_TP%d_%d" % (tm, k)
        a("s_cmp_lg_u32 s%d, %d" % (SB + 4 * k + 2, tm))
        a("s_cbranch_scc1 %s" % L)
        a("global_load_dword v%d, v%d, s[%d:%d]" % (DST + k, VT + k, SB + 4 * k, SB + 4 * k + 1))
        a.label(L)


def touches(a, T):
    VL, VWo, VBo, D0 = T, T + 1, T + 2, T + 4
    a("v_lshlrev_b32 v%d, 7, v0" % VL)
    a("v_lshrrev_b32 v%d, 2, v0" % VWo)
    a("v_mul_u32_u24 v%d, 0xc00, v%d" % (VWo, VWo))
    a("v_and_b32 v%d, 3, v0" % D0)
    a("v_lshl_or_b32 v%d, v%d, 7, v%d" % (VWo, D0, VWo))
    a("v_lshrrev_b32 v%d, 5, v0" % D0)
    a("v_and_b32 v%d, 0xfff, v%d" % (VBo, VL))
    a("v_lshl_or_b32 v%d, v%d, 15, v%d" % (VBo, D0, VBo))
    a("s_lshl_b32 s18, s5, 2")
    a("s_add_u32 s18, s18, s3")
    a("s_lshr_b32 s19, s4, 1")
    a("s_lshl_b32 s19, s19, 19")
    a("s_and_b32 s20, s4, 1")
    a("s_lshl_b32 s20, s20, 9")

    def wt(mreg, dst):
        a("s_mul_i32 s22, s%d, 171" % mreg)
        a("s_lshr_b32 s22, s22, 11")
        a("s_mul_i32 s23, s22, 12")
        a("s_sub_u32 s23, s%d, s23" % mreg)
        a("s_lshr_b32 s24, s23, 2")
        a("s_and_b32 s23, s23, 3")
        a("s_lshl_b32 s22, s22, 2")
        a("s_add_u32 s22, s22, s23")
        a("s_mul_i32 s22, s22, 0xc000")
        a("s_lshl_b32 s24, s24, 10")
        a("s_add_u32 s22, s22, s24")
        a("s_add_u32 s22, s22, s20")
        a("buffer_load_dword v%d, v%d, s[%d:%d], s22 offen" % (dst, VWo, R_W, R_W + 3))

    a("s_cmp_ge_u32 s18, 64")
    a("s_cbranch_scc1 K1_T1W")
    a("s_lshl_b32 s22, s18, 13")
    a("s_add_u32 s22, s22, s19")
    a("buffer_load_dword v%d, v%d, s[%d:%d], s22 offen" % (D0, VL, R_X, R_X + 3))
    a("s_branch K1_T2")
    a.label("K1_T1W")
    a("s_sub_u32 s21, s18, 64")
    wt(21, D0)
    a.label("K1_T2")
    a("s_cmp_ge_u32 s18, 32")
    a("s_cbranch_scc1 K1_T2B")
    a("s_add_u32 s21, s18, 64")
    wt(21, D0 + 1)
    a("s_branch K1_TDONE")
    a.label("K1_T2B")
    a("s_cmp_ge_u32 s18, 64")
    a("s_cbranch_scc1 K1_T2D")
    a("s_sub_u32 s21, s18, 32")
    a("s_lshl_b32 s22, s21, 16")
    a("s_lshl_b32 s23, s4, 12")
    a("s_add_u32 s22, s22, s23")
    a("buffer_load_dword v%d, v%d, s[%d:%d], s22 offen" % (D0 + 1, VBo, R_XB, R_XB + 3))
    a("s_branch K1_TDONE")
    a.label("K1_T2D")
    a("s_and_b32 s22, s18, 31")
    a("s_lshl_b32 s22, s22, 13")
    a("s_cmp_ge_u32 s18, 96")
    a("s_cbranch_scc1 K1_T2I")
    a("buffer_load_dword v%d, v%d, s[%d:%d], s22 offen" % (D0 + 1, VL, R_DR, R_DR + 3))
    a("s_branch K1_TDONE")
    a.label("K1_T2I")
    a("buffer_load_dword v%d, v%d, s[%d:%d], s22 offen" % (D0 + 1, VL, R_DI, R_DI + 3))
    a.label("K1_TDONE")
    return 2


def wotouch(a, T):
    a("s_lshl_b32 s18, s5, 2")
    a("s_add_u32 s18, s18, s3")
    a("s_cmp_ge_u32 s18, 64")
    a("s_cbranch_scc1 K1_WOT")
    a("s_lshl_b32 s18, s18, 13")
    a("v_lshlrev_b32 v%d, 7, v0" % T)
    a("buffer_load_dword v%d, v%d, s[%d:%d], s18 offen" % (T + 1, T, R_WO, R_WO + 3))
    a.label("K1_WOT")


def gen_k1(a):
    K = "k1_kernel"
    a.raw(".globl %s\n.p2align 8\n.type %s,@function\n%s:" % (K, K, K))
    a("s_cmp_ge_u32 s2, 256")
    a("s_cbranch_scc1 K1_END")
    load_ptrs(a)
    a("v_lshrrev_b32 v1, 6, v0")
    a("v_and_b32 v0, 63, v0")
    a("v_readfirstlane_b32 s3, v1")
    a("s_mov_b32 s26, s3")
    a("s_and_b32 s4, s2, 7")
    a("s_lshr_b32 s5, s2, 3")
    a("s_lshr_b32 s6, s5, 3")
    a("s_and_b32 s7, s5, 7")
    a("s_lshr_b32 s8, s4, 1")
    a("s_lshl_b32 s8, s8, 2")
    a("s_add_u32 s8, s8, s6")
    a("s_and_b32 s9, s4, 1")
    a("s_lshl_b32 s9, s9, 3")
    a("s_add_u32 s9, s9, s7")
    a("s_lshl_b32 s10, s4, 2")
    a("s_add_u32 s10, s10, s6")
    a("s_mov_b32 s28, 0x%x" % LOG2E)
    a("s_mov_b32 s29, 0x%x" % NLOG2E)
    a("s_waitcnt lgkmcnt(0)")
    srd(a, R_X, P_X, 2048 * 1024)
    srd(a, R_W, P_W, 512 * 3072)
    srd(a, R_XB, P_XB, 2048 * 1024)
    srd(a, R_DR, P_DR, 512 * 1024)
    srd(a, R_DI, P_DI, 512 * 1024)
    srd(a, R_WS, P_WS, WS_SIZE)
    srd(a, R_CR, P_CR, 2048 * 4096)
    srd(a, R_CI, P_CI, 2048 * 4096)
    srd(a, R_WP, P_WP, 32 * 512)
    srd(a, R_WO, P_WO, 512 * 1024)
    a("s_cmp_ge_u32 s3, 4")
    a("s_cbranch_scc1 K1_HELPER")
    S_RT, S_HP, S_S2, S_J = 8, 9, 10, 7

    vm = VMQ()
    st = Stamper(a, 250, 0)
    st()
    dbgst(a, 0, inv=True)
    dbgst(a, 5)
    LANE = 0
    XA = 2
    WQ = 14
    WV = 17
    A1, A2 = 20, 24
    I0, I1 = 28, 32
    VI = 36
    VF = 37
    VZ = 38
    ACQ, ACK, ACV = 40, 56, 72
    FR = 88
    T = 152
    a("s_getpc_b64 s[12:13]")
    a("v_lshlrev_b32 v%d, 6, v0" % T)
    NPF = 6
    for i in range(NPF):
        a("global_load_dword v%d, v%d, s[12:13] offset:0" % (T + 1 + i, T))
        if i != NPF - 1:
            a("v_add_u32 v%d, 0x1000, v%d" % (T, T))
    vm.issue("pf", NPF)
    a("s_or_b32 s14, s%d, s3" % S_RT)
    a("v_mov_b32 v%d, 0" % VZ)
    a("s_lshl_b32 s15, s%d, 3" % S_HP)
    if DBGST:
        a("s_add_u32 s15, s15, 128")
    a("s_add_u32 s16, s%d, s15" % P_DBG)
    a("s_addc_u32 s17, s%d, 0" % (P_DBG + 1))
    a("s_cmp_lg_u32 s14, 0")
    a("s_cbranch_scc1 K1_NOCLAIM")
    a("v_mov_b32 v%d, 1" % (T + 10))
    a("s_mov_b64 exec, 1")
    a("global_atomic_add v%d, v%d, v%d, s[16:17] sc0" % (T + 11, VZ, T + 10))
    a("s_mov_b64 exec, -1")
    a.label("K1_NOCLAIM")
    WF = T + 12
    wphi_frags(a, vm, LANE, WF, A1, A2, T + 20, S_HP)
    a("v_mov_b32 v%d, v%d" % (VI, T + 20))
    NT = 0
    if OPT["touch"]:
        NT = touches(a, T + 40)
        vm.issue("touch", NT)
    t0, t1, t2 = T + 24, T + 25, T + 26
    a("v_lshrrev_b32 v%d, 5, v0" % t0)
    a("s_lshl_b32 s18, s3, 5")
    a("v_add_u32 v%d, s18, v%d" % (t1, VI))
    a("v_lshrrev_b32 v%d, 1, v%d" % (t2, t1))
    a("v_and_b32 v%d, 7, v%d" % (t2, t2))
    a("v_xor_b32 v%d, v%d, v%d" % (t2, t2, t0))
    a("v_lshlrev_b32 v%d, 4, v%d" % (t2, t2))
    a("v_lshl_or_b32 v%d, v%d, 7, v%d" % (XA, t1, t2))
    for k in range(1, 4):
        a("v_xor_b32 v%d, 0x%x, v%d" % (XA + k, 32 * k, XA))
    for g in range(1, 3):
        for k in range(4):
            a("v_add_u32 v%d, 0x%x, v%d" % (XA + 4 * g + k, 65536 * g, XA + k))
    a("v_lshrrev_b32 v%d, 2, v0" % t1)
    a("v_and_b32 v%d, 3, v%d" % (t1, t1))
    a("v_lshl_or_b32 v%d, v%d, 3, v%d" % (t1, t0, t1))
    a("v_lshlrev_b32 v%d, 6, v%d" % (t1, t1))
    a("v_and_b32 v%d, 16, v0" % t2)
    a("v_lshl_or_b32 v%d, v%d, 1, v%d" % (t1, t2, t1))
    a("v_and_b32 v%d, 3, v0" % t2)
    a("v_lshl_or_b32 v%d, v%d, 3, v%d" % (WV, t2, t1))
    a("v_and_b32 v%d, 1, v0" % t2)
    a("v_lshl_or_b32 v%d, v%d, 4, v%d" % (WQ, t2, t1))
    a("v_and_b32 v%d, 2, v0" % t2)
    a("v_lshl_or_b32 v%d, v%d, 2, v%d" % (WQ, t2, WQ))
    for g in range(1, 3):
        a("v_add_u32 v%d, 0x%x, v%d" % (WQ + g, 65536 * g, WQ))
        a("v_add_u32 v%d, 0x%x, v%d" % (WV + g, 65536 * g, WV))
    a("v_lshlrev_b32 v%d, 3, v%d" % (t1, t0))
    a("v_sub_u32 v%d, v%d, v%d" % (t1, VI, t1))
    for ks, I in ((0, I0), (1, I1)):
        if ks:
            a("v_subrev_u32 v%d, 16, v%d" % (t1, t1))
        a("v_and_b32 v%d, 1, v%d" % (t2, t1))
        a("v_lshlrev_b32 v%d, 4, v%d" % (t2, t2))
        a("v_mov_b32 v%d, 0x3f80" % t0)
        a("v_lshlrev_b32 v%d, v%d, v%d" % (t2, t2, t0))
        a("v_ashrrev_i32 v%d, 1, v%d" % (t0, t1))
        for d in range(4):
            a("v_cmp_eq_u32 vcc, %d, v%d" % (d, t0))
            a("v_cndmask_b32 v%d, 0, v%d, vcc" % (I + d, t2))
    for r in range(48):
        a("v_mov_b32 v%d, 0" % (ACQ + r))

    def reads(g):
        c, k = g >> 2, g & 3
        slot = c % 5
        grp, off = slot >> 1, (slot & 1) * SLOT
        b = FR + (g & 3) * 16
        a("ds_read_b128 v[%d:%d], v%d offset:%d" % (b, b + 3, XA + 4 * grp + k, off))
        for p in range(3):
            areg = (WQ if p < 2 else WV) + grp
            for hf in range(2):
                o = off + 16384 + p * 4096 + (16 * k + 4 * hf) * 64
                d = b + 4 + p * 4 + hf * 2
                a("ds_read_b64_tr_b16 v[%d:%d], v%d offset:%d" % (d, d + 1, areg, o))

    def mfmas(g):
        b = FR + (g & 3) * 16
        a("v_mfma_f32_32x32x16_bf16 v[%d:%d], v[%d:%d], v[%d:%d], v[%d:%d]" % (ACQ, ACQ + 15, b + 4, b + 7, b, b + 3, ACQ, ACQ + 15))
        a("v_mfma_f32_32x32x16_bf16 v[%d:%d], v[%d:%d], v[%d:%d], v[%d:%d]" % (ACK, ACK + 15, b + 8, b + 11, b, b + 3, ACK, ACK + 15))
        a("v_mfma_f32_32x32x16_bf16 v[%d:%d], v[%d:%d], v[%d:%d], v[%d:%d]" % (ACV, ACV + 15, b, b + 3, b + 12, b + 15, ACV, ACV + 15))

    st()
    a("s_barrier")
    st()
    dbgst(a, 1)
    for g in range(3):
        reads(g)
    for g in range(32):
        issued_after = min(31, g + 2) - g
        a("s_waitcnt lgkmcnt(%d)" % (7 * issued_after))
        mfmas(g)
        if g + 3 < 32:
            if (g + 3) % 4 == 0:
                a("s_waitcnt lgkmcnt(0)")
                a("s_barrier")
            reads(g + 3)
        if g == 2:
            a("s_waitcnt vmcnt(%d)" % NT)
            wphi_finish(a, WF, A1, A2, VI)
        if g == 6:
            a("s_cmp_lg_u32 s14, 0")
            a("s_cbranch_scc1 K1_NOZERO")
            a("v_readfirstlane_b32 s19, v%d" % (T + 11))
            a("s_mov_b32 s20, 1")
            a("s_cmp_lg_u32 s19, 0")
            a("s_cbranch_scc1 K1_NOZERO")
            a("s_mov_b32 s20, 0")
            zero_kv(a, T + 30, VZ, S_HP)
            a.label("K1_NOZERO")
        if g == 14:
            a("s_cmp_lg_u32 s14, 0")
            a("s_cbranch_scc1 K1_NOFLAG")
            a("s_cmp_lg_u32 s20, 0")
            a("s_cbranch_scc1 K1_NOFLAG")
            a("s_waitcnt vmcnt(0)")
            a("v_mov_b32 v%d, 1" % (T + 10))
            a("s_mov_b64 exec, 1")
            a("global_atomic_add v%d, v%d, s[16:17] offset:4" % (VZ, T + 10))
            a("s_mov_b64 exec, -1")
            a.label("K1_NOFLAG")
        if g == 16 and OPT["wotouch"]:
            wotouch(a, T + 40)
        if g == 28:
            a("global_load_dword v%d, v%d, s[16:17] offset:4 sc1" % (VF, VZ))

    st()
    QF = FR
    KF = FR + 8
    VFm = FR + 16
    DP = FR + 32
    PH = FR + 48
    slot2 = 2 * SLOT
    for d in range(8):
        a("v_cvt_pk_bf16_f32 v%d, v%d, v%d" % (QF + d, ACQ + 2 * d, ACQ + 2 * d + 1))
    a("s_lshl_b32 s18, s3, 12")
    a("s_add_u32 s18, s18, 0x%x" % slot2)
    a("v_lshlrev_b32 v%d, 4, v0" % T)
    a("v_add_u32 v%d, s18, v%d" % (T, T))
    a("ds_write_b128 v%d, v[%d:%d]" % (T, QF, QF + 3))
    a("ds_write_b128 v%d, v[%d:%d] offset:1024" % (T, QF + 4, QF + 7))
    for d in range(8):
        a("v_cvt_pk_bf16_f32 v%d, v%d, v%d" % (KF + d, ACK + 2 * d, ACK + 2 * d + 1))
    a("s_waitcnt lgkmcnt(0)")
    a("s_barrier")
    st()
    dbgst(a, 2)
    a("v_mfma_f32_32x32x16_bf16 v[%d:%d], v[%d:%d], v[%d:%d], 0" % (DP, DP + 15, A1, A1 + 3, KF, KF + 3))
    a("v_mfma_f32_32x32x16_bf16 v[%d:%d], v[%d:%d], v[%d:%d], v[%d:%d]" % (DP, DP + 15, A2, A2 + 3, KF + 4, KF + 7, DP, DP + 15))
    for d in range(8):
        a("v_cvt_pk_bf16_f32 v%d, v%d, v%d" % (VFm + d, ACV + 2 * d, ACV + 2 * d + 1))
    AV0, AV1 = ACQ, ACQ + 8
    a("v_cmp_gt_u32 vcc, 16, v%d" % VI)
    a("v_mov_b32 v%d, 0x3f803f80" % (T + 1))
    for d in range(8):
        a("v_cndmask_b32 v%d, v%d, v%d, vcc" % (AV0 + d, T + 1, VFm + d))
        a("v_cndmask_b32 v%d, v%d, v%d, vcc" % (AV1 + d, VFm + d, T + 1))
    softmax_units(a, DP, T + 2, PH)
    st()
    for hd, D in ((0, ACK), (1, ACV)):
        p = PH + 8 * hd
        a("v_mfma_f32_32x32x16_bf16 v[%d:%d], v[%d:%d], v[%d:%d], 0" % (D, D + 15, p, p + 3, I0, I0 + 3))
        a("v_mfma_f32_32x32x16_bf16 v[%d:%d], v[%d:%d], v[%d:%d], v[%d:%d]" % (D, D + 15, p + 4, p + 7, I1, I1 + 3, D, D + 15))
    BK = FR
    for hd, D in ((0, ACK), (1, ACV)):
        for d in range(8):
            a("v_cvt_pk_bf16_f32 v%d, v%d, v%d" % (BK + 8 * hd + d, D + 2 * d, D + 2 * d + 1))
    KV0, KV1 = FR + 16, FR + 32
    for hd, D, AV in ((0, KV0, AV0), (1, KV1, AV1)):
        b = BK + 8 * hd
        a("v_mfma_f32_32x32x16_bf16 v[%d:%d], v[%d:%d], v[%d:%d], 0" % (D, D + 15, AV, AV + 3, b, b + 3))
        a("v_mfma_f32_32x32x16_bf16 v[%d:%d], v[%d:%d], v[%d:%d], v[%d:%d]" % (D, D + 15, AV + 4, AV + 7, b + 4, b + 7, D, D + 15))
    a("s_lshl_b32 s18, s3, 12")
    a("s_add_u32 s18, s18, 0x%x" % (slot2 + 16384))
    a("v_lshlrev_b32 v%d, 4, v0" % T)
    a("v_add_u32 v%d, s18, v%d" % (T + 1, T))
    a("ds_write_b128 v%d, v[%d:%d]" % (T + 1, KV0, KV0 + 3))
    a("ds_write_b128 v%d, v[%d:%d] offset:1024" % (T + 1, KV0 + 4, KV0 + 7))
    a("ds_write_b128 v%d, v[%d:%d] offset:2048" % (T + 1, KV1 + 8, KV1 + 11))
    a("ds_write_b128 v%d, v[%d:%d] offset:3072" % (T + 1, KV1 + 12, KV1 + 15))
    a("v_cmp_gt_u32 vcc, 32, v0")
    a("v_cndmask_b32 v%d, v%d, v%d, vcc" % (T + 2, KV1, KV0 + 8))
    a("s_lshl_b32 s18, s3, 12")
    a("s_add_u32 s18, s18, 0x%x" % (slot2 + 2048))
    a("v_lshlrev_b32 v%d, 2, v0" % (T + 3))
    a("v_add_u32 v%d, s18, v%d" % (T + 4, T + 3))
    a("ds_write_b32 v%d, v%d" % (T + 4, T + 2))
    a("s_waitcnt lgkmcnt(0)")
    st()
    a("s_barrier")
    st()
    a("s_lshl_b32 s18, s3, 10")
    a("s_add_u32 s18, s18, 0x%x" % (slot2 + 16384))
    a("v_add_u32 v%d, s18, v%d" % (T + 1, T))
    RB = FR
    for ww in range(4):
        a("ds_read_b128 v[%d:%d], v%d offset:%d" % (RB + 4 * ww, RB + 4 * ww + 3, T + 1, 4096 * ww))
    a("v_add_u32 v%d, 0x%x, v%d" % (T + 4, slot2 + 2048, T + 3))
    for ww in range(4):
        a("ds_read_b32 v%d, v%d offset:%d" % (RB + 16 + ww, T + 4, 4096 * ww))
    a("s_mov_b32 s21, 0")
    a.label("K1_POLL")
    a("s_waitcnt vmcnt(0)")
    a("v_readfirstlane_b32 s19, v%d" % VF)
    a("s_cmp_lg_u32 s19, 0")
    a("s_cbranch_scc1 K1_POLLDONE")
    a("s_add_u32 s21, s21, 1")
    a("s_cmp_lg_u32 s21, 4000")
    a("s_cbranch_scc1 K1_POLLMORE")
    a("v_mov_b32 v%d, 1" % (T + 10))
    a("s_mov_b64 exec, 1")
    a("global_atomic_add v%d, v%d, v%d, s[16:17] sc0" % (T + 11, VZ, T + 10))
    a("s_waitcnt vmcnt(0)")
    a("s_mov_b64 exec, -1")
    a("v_readfirstlane_b32 s19, v%d" % (T + 11))
    a("s_cmp_lg_u32 s19, 0")
    a("s_cbranch_scc1 K1_POLLMORE")
    zero_kv(a, T + 30, VZ, S_HP)
    a("s_waitcnt vmcnt(0)")
    a("s_mov_b64 exec, 1")
    a("global_atomic_add v%d, v%d, s[16:17] offset:4" % (VZ, T + 10))
    a("s_mov_b64 exec, -1")
    a.label("K1_POLLMORE")
    a("s_sleep 8")
    a("global_load_dword v%d, v%d, s[16:17] offset:4 sc1" % (VF, VZ))
    a("s_branch K1_POLL")
    a.label("K1_POLLDONE")
    st()
    a("s_waitcnt lgkmcnt(0)")
    for i in range(4):
        a("v_add_f32 v%d, v%d, v%d" % (RB + i, RB + i, RB + 4 + i))
        a("v_add_f32 v%d, v%d, v%d" % (RB + 8 + i, RB + 8 + i, RB + 12 + i))
    a("v_add_f32 v%d, v%d, v%d" % (RB + 16, RB + 16, RB + 17))
    a("v_add_f32 v%d, v%d, v%d" % (RB + 18, RB + 18, RB + 19))
    for i in range(4):
        a("v_add_f32 v%d, v%d, v%d" % (RB + i, RB + i, RB + 8 + i))
    a("v_add_f32 v%d, v%d, v%d" % (RB + 16, RB + 16, RB + 18))
    a("s_lshl_b32 s18, s%d, 12" % S_HP)
    a("s_lshl_b32 s19, s3, 10")
    a("s_add_u32 s18, s18, s19")
    for i in range(4):
        a("buffer_atomic_add_f32 v%d, v%d, s[%d:%d], s18 offen offset:%d" % (RB + i, T + 3, R_WS, R_WS + 3, 256 * i))
    a("s_cmp_lg_u32 s3, 0")
    a("s_cbranch_scc1 K1_CEND")
    a("s_lshl_b32 s18, s%d, 8" % S_HP)
    a("s_add_u32 s18, s18, 0x%x" % WS_Z)
    a("buffer_atomic_add_f32 v%d, v%d, s[%d:%d], s18 offen" % (RB + 16, T + 3, R_WS, R_WS + 3))
    a.label("K1_CEND")
    dbgst(a, 3)
    if STAMP:
        st()
        a("s_waitcnt vmcnt(0)")
        st()
        st.flush(26, T)
    a("s_endpgm")

    a.label("K1_HELPER")
    vm = VMQ()
    st = Stamper(a, 250, 0)
    st()
    a("s_sub_u32 s3, s3, 4")
    VX, VW, VB, VD = 1, 2, 3, 4
    t0, t1, t2 = 10, 11, 12
    a("s_and_b32 s18, s3, 1")
    a("s_lshl_b32 s18, s18, 2")
    a("v_lshrrev_b32 v%d, 4, v0" % t0)
    a("v_add_u32 v%d, s18, v%d" % (t1, t0))
    a("v_and_b32 v%d, 7, v%d" % (t1, t1))
    a("v_and_b32 v%d, 7, v0" % t2)
    a("v_xor_b32 v%d, v%d, v%d" % (t1, t1, t2))
    a("v_lshlrev_b32 v%d, 4, v%d" % (t1, t1))
    a("v_lshrrev_b32 v%d, 3, v0" % t2)
    a("v_lshl_or_b32 v%d, v%d, 10, v%d" % (VX, t2, t1))
    a("v_lshrrev_b32 v%d, 2, v0" % t1)
    a("v_mul_u32_u24 v%d, 0xc00, v%d" % (t1, t1))
    a("v_and_b32 v%d, 3, v0" % t2)
    a("v_lshl_or_b32 v%d, v%d, 4, v%d" % (VW, t2, t1))
    a("s_lshl_b32 s12, s%d, 17" % S_RT)
    a("s_lshl_b32 s18, s3, 13")
    a("s_add_u32 s12, s12, s18")
    a("s_mul_i32 s13, s3, 0xc000")
    a("s_lshl_b32 s18, s%d, 6" % S_HP)
    a("s_add_u32 s13, s13, s18")
    a("s_lshl_b32 s14, s3, 10")

    def stageA(c):
        slot = (c % 5) * SLOT
        if OPT["rot"]:
            a("s_add_u32 s22, s%d, %d" % (S_J, c))
            a("s_and_b32 s22, s22, 7")
        else:
            a("s_mov_b32 s22, %d" % c)
        a("s_lshl_b32 s23, s22, 7")
        a("s_add_u32 s23, s23, s12")
        a("s_mul_i32 s24, s22, 0x30000")
        a("s_add_u32 s24, s24, s13")
        for m in range(4):
            a("s_add_u32 m0, s14, 0x%x" % (slot + m * 4096))
            a("s_add_u32 s18, s23, 0x%x" % (m * 32768))
            a("buffer_load_dwordx4 v%d, s[%d:%d], s18 offen lds" % (VX, R_X, R_X + 3))
        for p in range(3):
            a("s_add_u32 m0, s14, 0x%x" % (slot + 16384 + p * 4096))
            a("s_add_u32 s18, s24, 0x%x" % (p * 1024))
            a("buffer_load_dwordx4 v%d, s[%d:%d], s18 offen lds" % (VW, R_W, R_W + 3))
        vm.issue(("c", c), 7)

    uid = [0]

    def stageB(c):
        cb = c - 8
        slot = (c % 5) * SLOT
        if OPT["rot"]:
            a("s_add_u32 s22, s%d, %d" % (S_J, cb))
            a("s_and_b32 s22, s22, 3")
            a("s_lshl_b32 s22, s22, 8")
        else:
            a("s_mov_b32 s22, %d" % (cb << 8))
        a("s_add_u32 s23, s15, s22")
        a("s_add_u32 s24, s16, s22")
        for m in range(4):
            a("s_add_u32 m0, s14, 0x%x" % (slot + m * 4096))
            a("s_add_u32 s18, s23, 0x%x" % (m * 512 * 1024))
            a("buffer_load_dwordx4 v%d, s[%d:%d], s18 offen lds" % (VB, R_XB, R_XB + 3))
        for m in range(4):
            a("s_add_u32 m0, s14, 0x%x" % (slot + 16384 + m * 4096))
            a("s_add_u32 s18, s24, 0x%x" % ((m & 1) * 16384))
            R = R_DR if m < 2 else R_DI
            if m == 2:
                uid[0] += 1
                L1, L2 = "K1_SP%d" % uid[0], "K1_SPE%d" % uid[0]
                a("s_cmp_eq_u32 s17, 0")
                a("s_cbranch_scc1 %s" % L1)
                a("buffer_load_dwordx4 v%d, s[%d:%d], s18 offen lds" % (VD, R, R + 3))
                a("s_branch %s" % L2)
                a.label(L1)
                a("s_mov_b64 exec, 0xffff")
                a("s_add_u32 s19, s22, 0x%x" % (256 * 1024))
                a("buffer_load_dwordx4 v%d, s[%d:%d], s19 offen lds" % (VD, R_DR, R_DR + 3))
                a("s_not_b64 exec, exec")
                a("buffer_load_dwordx4 v%d, s[%d:%d], s18 offen lds" % (VD, R, R + 3))
                a("s_mov_b64 exec, -1")
                a.label(L2)
            else:
                a("buffer_load_dwordx4 v%d, s[%d:%d], s18 offen lds" % (VD, R, R + 3))
        vm.issue(("c", c), 8)

    for c in range(2):
        stageA(c)
        st()
    a("s_lshl_b32 s18, s3, 2")
    a("v_add_u32 v%d, s18, v%d" % (t1, t0))
    a("v_and_b32 v%d, 15, v0" % t2)
    a("v_xor_b32 v%d, v%d, v%d" % (t1, t1, t2))
    a("v_lshlrev_b32 v%d, 4, v%d" % (t1, t1))
    a("v_lshl_or_b32 v%d, v%d, 15, v%d" % (VB, t0, t1))
    a("v_lshl_or_b32 v%d, v%d, 10, v%d" % (VD, t0, t1))
    a("s_lshl_b32 s15, s3, 7")
    a("s_add_u32 s15, s15, s%d" % S_S2)
    a("s_lshl_b32 s15, s15, 10")
    a("s_lshl_b32 s16, s%d, 5" % S_J)
    a("s_lshl_b32 s18, s3, 2")
    a("s_add_u32 s16, s16, s18")
    a("s_lshl_b32 s16, s16, 10")
    a("s_or_b32 s17, s%d, s3" % S_J)
    for c in range(2, 5):
        stageA(c)
        st()
    A1, A2 = 20, 24
    WF = 28
    VI = 36
    FF = 40
    wphi_frags(a, vm, 0, WF, A1, A2, 60, S_HP)
    a("v_mov_b32 v%d, v60" % VI)
    a("s_lshr_b32 s18, s3, 1")
    a("s_lshl_b32 s18, s18, 5")
    a("v_add_u32 v%d, s18, v%d" % (t1, VI))
    a("v_lshrrev_b32 v%d, 5, v0" % t2)
    a("v_lshlrev_b32 v%d, 4, v%d" % (t2, t2))
    a("v_lshl_or_b32 v%d, v%d, 17, v%d" % (13, t1, t2))
    a("v_subrev_u32 v%d, 32, v%d" % (14, t1))
    a("v_max_i32 v%d, 0, v%d" % (14, 14))
    a("v_lshl_or_b32 v%d, v%d, 17, v%d" % (14, 14, t2))
    a("v_mov_b32 v%d, v%d" % (15, t1))
    for kk in range(4):
        a("buffer_load_dwordx4 v[%d:%d], v13, s[%d:%d], 0 offen offset:%d" % (FF + 4 * kk, FF + 4 * kk + 3, R_CR, R_CR + 3, 32 * kk))
    for kk in range(4):
        a("buffer_load_dwordx4 v[%d:%d], v14, s[%d:%d], 0 offen offset:%d" % (FF + 16 + 4 * kk, FF + 16 + 4 * kk + 3, R_CI, R_CI + 3, 32 * kk))
    vm.issue("f", 8)

    st()
    for c in range(8):
        a("s_waitcnt vmcnt(%d)" % vm.wait_n(("c", c)))
        if c in (0, 1, 4, 7):
            st()
        a("s_barrier")
        if c >= 1:
            if c + 4 < 8:
                stageA(c + 4)
            else:
                stageB(c + 4)
    wphi_finish(a, WF, A1, A2, VI)
    a("v_cmp_lt_u32 vcc, 32, v15")
    for i in range(16):
        a("v_cndmask_b32 v%d, v%d, v%d, vcc" % (FF + i, FF + i, FF + 16 + i))
    BA, BB = 72, 80
    a("v_and_b32 v%d, 3, v%d" % (t1, VI))
    a("v_and_b32 v%d, 4, v%d" % (t2, VI))
    a("v_lshl_or_b32 v%d, v%d, 1, v%d" % (t1, t2, t1))
    a("v_and_b32 v%d, 8, v%d" % (t2, VI))
    a("v_lshrrev_b32 v%d, 1, v%d" % (t2, t2))
    a("v_or_b32 v%d, v%d, v%d" % (t1, t1, t2))
    a("v_and_b32 v%d, 16, v%d" % (t2, VI))
    a("v_or_b32 v%d, v%d, v%d" % (t1, t1, t2))
    a("v_lshrrev_b32 v%d, 5, v0" % t0)
    a("v_and_b32 v%d, 15, v%d" % (t2, t1))
    a("v_xor_b32 v%d, v%d, v%d" % (t2, t2, t0))
    a("v_lshlrev_b32 v%d, 4, v%d" % (t2, t2))
    a("v_lshl_or_b32 v%d, v%d, 8, v%d" % (t2, t1, t2))
    a("s_lshr_b32 s18, s3, 1")
    a("s_lshl_b32 s18, s18, 13")
    a("s_add_u32 s18, s18, 0x%x" % (3 * SLOT))
    a("v_add_u32 v%d, s18, v%d" % (BA, t2))
    a("s_and_b32 s18, s3, 1")
    a("s_lshl_b32 s18, s18, 13")
    a("s_add_u32 s18, s18, 0x%x" % (3 * SLOT + 16384))
    a("v_add_u32 v%d, s18, v%d" % (BB, t2))
    for k in range(1, 8):
        a("v_xor_b32 v%d, 0x%x, v%d" % (BA + k, 32 * k, BA))
        a("v_xor_b32 v%d, 0x%x, v%d" % (BB + k, 32 * k, BB))
    ACU = 96
    for r in range(16):
        a("v_mov_b32 v%d, 0" % (ACU + r))
    a("s_barrier")
    st()
    QF = 112
    DP = 120
    PH = 136
    T = 152
    a("s_lshl_b32 s18, s3, 12")
    a("s_add_u32 s18, s18, 0x%x" % (2 * SLOT))
    a("v_lshlrev_b32 v%d, 4, v0" % T)
    a("v_add_u32 v%d, s18, v%d" % (T + 1, T))
    a("ds_read_b128 v[%d:%d], v%d" % (QF, QF + 3, T + 1))
    a("ds_read_b128 v[%d:%d], v%d offset:1024" % (QF + 4, QF + 7, T + 1))
    a("s_waitcnt lgkmcnt(1)")
    a("v_mfma_f32_32x32x16_bf16 v[%d:%d], v[%d:%d], v[%d:%d], 0" % (DP, DP + 15, A1, A1 + 3, QF, QF + 3))
    a("s_waitcnt lgkmcnt(0)")
    a("v_mfma_f32_32x32x16_bf16 v[%d:%d], v[%d:%d], v[%d:%d], v[%d:%d]" % (DP, DP + 15, A2, A2 + 3, QF + 4, QF + 7, DP, DP + 15))
    softmax_units(a, DP, T + 2, PH)
    a("s_lshl_b32 s18, s%d, 2" % S_RT)
    a("s_add_u32 s18, s18, s3")
    a("s_lshl_b32 s18, s18, 16")
    a("s_lshl_b32 s19, s%d, 12" % S_HP)
    a("s_add_u32 s18, s18, s19")
    a("s_add_u32 s18, s18, 0x%x" % WS_PHI)
    for u in range(4):
        a("buffer_store_dwordx4 v[%d:%d], v%d, s[%d:%d], s18 offen offset:%d" % (PH + 4 * u, PH + 4 * u + 3, T, R_WS, R_WS + 3, 1024 * u))
    vm.issue("phi", 4)
    st()
    a("s_waitcnt vmcnt(%d)" % vm.wait_n(("c", 9)))
    st()
    a("s_barrier")
    st()
    BF = 160
    NB = 6
    DIST = 4

    def breads(gs):
        c = 8 + gs // 8
        k = gs % 8
        off = (SLOT if c in (9, 11) else 0)
        b = BF + (gs % NB) * 8
        a("ds_read_b128 v[%d:%d], v%d offset:%d" % (b, b + 3, BA + k, off))
        a("ds_read_b128 v[%d:%d], v%d offset:%d" % (b + 4, b + 7, BB + k, off))

    def bmf(gs):
        b = BF + (gs % NB) * 8
        a("v_mfma_f32_32x32x16_bf16 v[%d:%d], v[%d:%d], v[%d:%d], v[%d:%d]" % (ACU, ACU + 15, b, b + 3, b + 4, b + 7, ACU, ACU + 15))

    for half in range(2):
        g0 = 16 * half
        if half == 1:
            a("s_waitcnt vmcnt(%d)" % vm.wait_n(("c", 11)))
            st()
            a("s_barrier")
            st()
            for k in range(8):
                a("v_subrev_u32 v%d, 0x%x, v%d" % (BA + k, 3 * SLOT, BA + k))
                a("v_subrev_u32 v%d, 0x%x, v%d" % (BB + k, 3 * SLOT, BB + k))
        for g in range(g0, g0 + DIST):
            breads(g)
        for g in range(g0, g0 + 16):
            after = min(g0 + 15, g + DIST - 1) - g
            a("s_waitcnt lgkmcnt(%d)" % (2 * after))
            bmf(g)
            if g + DIST < g0 + 16:
                breads(g + DIST)
    st()
    UF = 112
    for d in range(8):
        a("v_cvt_pk_bf16_f32 v%d, v%d, v%d" % (UF + d, ACU + 2 * d, ACU + 2 * d + 1))
    a("s_lshl_b32 s18, s3, 11")
    a("s_add_u32 s18, s18, 0x%x" % (3 * SLOT))
    a("v_add_u32 v%d, s18, v%d" % (T + 1, T))
    a("ds_write_b128 v%d, v[%d:%d]" % (T + 1, UF, UF + 3))
    a("ds_write_b128 v%d, v[%d:%d] offset:1024" % (T + 1, UF + 4, UF + 7))
    a("s_xor_b32 s18, s3, 2")
    a("s_lshl_b32 s18, s18, 11")
    a("s_add_u32 s18, s18, 0x%x" % (3 * SLOT))
    a("v_add_u32 v%d, s18, v%d" % (T + 2, T))
    a("s_waitcnt lgkmcnt(0)")
    a("s_barrier")
    a("ds_read_b128 v[%d:%d], v%d" % (UF + 8, UF + 11, T + 2))
    a("ds_read_b128 v[%d:%d], v%d offset:1024" % (UF + 12, UF + 15, T + 2))
    DH = 120 + 16
    a("s_lshr_b32 s18, s3, 1")
    a("s_cmp_eq_u32 s18, 0")
    a("s_cbranch_scc1 K1_SA0")
    for i in range(8):
        a("v_swap_b32 v%d, v%d" % (FF + i, FF + 8 + i))
    a.label("K1_SA0")
    a("v_mfma_f32_32x32x16_bf16 v[%d:%d], v[%d:%d], v[%d:%d], 0" % (DH, DH + 15, UF, UF + 3, FF, FF + 3))
    a("v_mfma_f32_32x32x16_bf16 v[%d:%d], v[%d:%d], v[%d:%d], v[%d:%d]" % (DH, DH + 15, UF + 4, UF + 7, FF + 4, FF + 7, DH, DH + 15))
    a("s_waitcnt lgkmcnt(1)")
    a("v_mfma_f32_32x32x16_bf16 v[%d:%d], v[%d:%d], v[%d:%d], v[%d:%d]" % (DH, DH + 15, UF + 8, UF + 11, FF + 8, FF + 11, DH, DH + 15))
    a("s_waitcnt lgkmcnt(0)")
    a("v_mfma_f32_32x32x16_bf16 v[%d:%d], v[%d:%d], v[%d:%d], v[%d:%d]" % (DH, DH + 15, UF + 12, UF + 15, FF + 12, FF + 15, DH, DH + 15))
    HP = 112
    for d in range(8):
        a("v_cvt_pk_bf16_f32 v%d, v%d, v%d" % (HP + d, DH + 2 * d, DH + 2 * d + 1))
    a("v_lshrrev_b32 v%d, 5, v0" % t0)
    a("v_lshlrev_b32 v%d, 4, v%d" % (t0, t0))
    a("v_lshl_or_b32 v%d, v15, 10, v%d" % (t0, t0))
    a("s_lshl_b32 s18, s%d, 16" % S_S2)
    a("s_lshl_b32 s19, s%d, 7" % S_J)
    a("s_add_u32 s18, s18, s19")
    a("s_and_b32 s19, s3, 1")
    a("s_lshl_b32 s19, s19, 6")
    a("s_add_u32 s18, s18, s19")
    a("s_add_u32 s18, s18, 0x%x" % WS_H)
    a("buffer_store_dwordx4 v[%d:%d], v%d, s[%d:%d], s18 offen" % (HP, HP + 3, t0, R_WS, R_WS + 3))
    a("buffer_store_dwordx4 v[%d:%d], v%d, s[%d:%d], s18 offen offset:32" % (HP + 4, HP + 7, t0, R_WS, R_WS + 3))
    dbgst(a, 4)
    if STAMP:
        st()
        a("s_waitcnt vmcnt(0)")
        st()
        st.flush(26, t0)
    a.label("K1_END")
    a("s_endpgm")


def zero_kv(a, TT, VZ, S_HP):
    base = (TT + 3) & ~3
    for i in range(4):
        a("v_mov_b32 v%d, 0" % (base + i))
    a("v_lshlrev_b32 v%d, 4, v0" % (base + 4))
    a("s_lshl_b32 s18, s%d, 12" % S_HP)
    for i in range(4):
        a("buffer_store_dwordx4 v[%d:%d], v%d, s[%d:%d], s18 offen offset:%d sc1" % (base, base + 3, base + 4, R_WS, R_WS + 3, 1024 * i))
    a("s_lshl_b32 s18, s%d, 8" % S_HP)
    a("s_add_u32 s18, s18, 0x%x" % WS_Z)
    a("s_mov_b64 exec, 0xffff")
    a("buffer_store_dwordx4 v[%d:%d], v%d, s[%d:%d], s18 offen sc1" % (base, base + 3, base + 4, R_WS, R_WS + 3))
    a("s_mov_b64 exec, -1")


def kd(name, vgpr):
    return """.p2align 6
.amdhsa_kernel %s
  .amdhsa_next_free_vgpr %d
  .amdhsa_next_free_sgpr 102
  .amdhsa_accum_offset %d
  .amdhsa_group_segment_fixed_size 0
  .amdhsa_kernarg_size 96
  .amdhsa_user_sgpr_count 2
  .amdhsa_user_sgpr_kernarg_segment_ptr 1
  .amdhsa_system_sgpr_workgroup_id_x 1
.end_amdhsa_kernel
""" % (name, vgpr, vgpr)


def main():
    out = sys.argv[1] if len(sys.argv) > 1 else "cdna_kernels/%s.s" % NAME
    only1 = "--k1" in sys.argv
    global STAMP
    if "--dbgst" in sys.argv:
        import gen
        gen.DBGST = True
        globals()["DBGST"] = True
    for arg in sys.argv:
        if arg.startswith("--opt="):
            import gen
            for kv in arg[6:].split(","):
                k_, v_ = kv.split("=")
                val = tuple(int(z) for z in v_.split("_")) if "_" in v_ else int(v_)
                gen.OPT[k_] = val
                OPT[k_] = val
    for arg in sys.argv:
        if arg.startswith("--stsfx="):
            import gen
            gen.STSFX = arg[8:].replace("+", " ")
    if "--stamp" in sys.argv:
        STAMP = True
        import gen
        gen.STAMP = True
    hdr = open("cdna_kernels/%s.s.ref" % NAME).read().split("; Override launch geometry")[0]
    s = hdr
    s += "; @launch kernel=k1_kernel grid=(256,1,1) block=(512,1,1) lds=163840\n"
    if not only1:
        s += "; @launch kernel=k2_kernel grid=(256,1,1) block=(512,1,1) lds=163840\n"
    s += '.amdgcn_target "amdgcn-amd-amdhsa--gfx950"\n.text\n'
    a = Asm()
    if OPT["v"] == 2:
        from gen1 import gen_k1 as g1
        g1(a)
    else:
        gen_k1(a)
    s += a.text()
    if not only1:
        if OPT["k2v"] == 2:
            from gen3 import gen_k2
        else:
            from gen2 import gen_k2
        b = Asm()
        gen_k2(b)
        s += b.text()
    s += "K_TEXT_END:\n"
    s += '.section .rodata,"a"\n'
    s += kd("k1_kernel", 256)
    if not only1:
        s += kd("k2_kernel", 256)
    open(out, "w").write(s)
    print("wrote", out, len(s), "bytes; k1 instrs", a.ninstr)


if __name__ == "__main__":
    main()
```
